```python
import torch

def _softmax(x, axis=-1):
    return torch.softmax(x, dim=axis)
def _gelu(x):
    return torch.nn.functional.gelu(x, approximate="tanh")
def _silu(x):
    return torch.nn.functional.silu(x)
def _sigmoid(x):
    return torch.sigmoid(x)
def _layernorm(x, axis=-1, eps=1e-5):
    m = x.mean(dim=axis, keepdim=True)
    v = x.var(dim=axis, keepdim=True, unbiased=False)
    return (x - m) / torch.sqrt(v + eps)
def _scatter_add(tgt, idx, src, axis=0):
    return tgt.clone().index_add_(axis, idx, src)
def _segment_sum(src, seg, n):
    out = torch.zeros((n,) + src.shape[1:], dtype=src.dtype)
    return out.index_add_(0, seg, src)
def _pad(x, pw):
    flat = tuple(v for pair in reversed(pw) for v in pair)
    return torch.nn.functional.pad(x, flat)

kernel_name = 'sequential_preLN__gqa_block_cached__dense_activation_silu__decode'

def setup_inputs():

    _w = (lambda a: (lambda t: t.to(torch.bfloat16) if t.is_floating_point() else t)(torch.as_tensor(a)))
    def _A_setup():
        B, Sq, D = 2, 1, 1024
        Hq, Hkv, Sk, Dh = 32, 4, 16384, 128
        assert Hq % Hkv == 0, (Hq, Hkv)
        return {
            "x": _w((lambda *s: torch.randn(*s, dtype=torch.bfloat16) * 0.1)(B, Sq, D)),
            "k_cache": _w((lambda *s: torch.randn(*s, dtype=torch.bfloat16) * 1.6)(B, Hkv, Sk, Dh)),
            "v_cache": _w((lambda *s: torch.randn(*s, dtype=torch.bfloat16) * 1.6)(B, Hkv, Sk, Dh)),
            "wq": _w((lambda *s: torch.randn(*s, dtype=torch.bfloat16) * 1.6)(D, Hq * Dh) * (D ** -0.5)),
            "wo": _w((lambda *s: torch.randn(*s, dtype=torch.bfloat16) * 1.6)(Hq * Dh, D) * ((Hq * Dh) ** -0.5)),
        }
    _A_in = _A_setup()

    def _B_setup():
        B, S, D, F = 2, 1, 1024, 3584
        return {
            "x": _w((lambda *s: torch.randn(*s, dtype=torch.bfloat16) * 0.1)(B, S, D)),
            "w1": _w((lambda *s: torch.randn(*s, dtype=torch.bfloat16) * 3.2)(D, F) * (D ** -0.5)),
            "w2": _w((lambda *s: torch.randn(*s, dtype=torch.bfloat16) * 3.2)(F, D) * (F ** -0.5)),
        }
    _B_in = _B_setup()

    return {
        "A_x": _A_in["x"],
        "A_k_cache": _A_in["k_cache"],
        "A_v_cache": _A_in["v_cache"],
        "A_wq": _A_in["wq"],
        "A_wo": _A_in["wo"],
        "B_x": _B_in["x"],
        "B_w1": _B_in["w1"],
        "B_w2": _B_in["w2"],
    }

def reference(A_x, A_k_cache, A_v_cache, A_wq, A_wo, B_x, B_w1, B_w2):
    def _A_ref(x, k_cache, v_cache, wq, wo):
        B, Sq, D = x.shape
        Hq, Dh = 32, 128
        Hkv = k_cache.shape[1]
        rep = Hq // Hkv
        q = (lambda x, *d: x.permute(*d))((x @ wq).reshape(B, Sq, Hq, Dh), 0, 2, 1, 3)
        k = (lambda x, n, axis: torch.repeat_interleave(x, n, dim=axis))(k_cache, rep, axis=1)
        v = (lambda x, n, axis: torch.repeat_interleave(x, n, dim=axis))(v_cache, rep, axis=1)
        scores = torch.einsum("bhqd,bhkd->bhqk", q, k) * (Dh ** -0.5)
        p = _softmax(scores, axis=-1)
        o = torch.einsum("bhqk,bhkd->bhqd", p, v)
        return (lambda x, *d: x.permute(*d))(o, 0, 2, 1, 3).reshape(B, Sq, Hq * Dh) @ wo

    def _B_ref(x, w1, w2):
        h = torch.einsum("bsd,df->bsf", x, w1)
        h = _silu(h)
        out = torch.einsum("bsf,fd->bsd", h, w2)
        return out

    x = A_x
    h = x + _A_ref(_layernorm(x, axis=-1), A_k_cache, A_v_cache, A_wq, A_wo)
    h2 = h + _B_ref(_layernorm(h, axis=-1), B_w1, B_w2)
    return h2
```

```python
class Asm:
    def __init__(self):
        self.lines = []
        self.nlabel = 0
    def __call__(self, s=""):
        for l in s.split("\n"):
            self.lines.append(l)
    def label(self, name):
        self.lines.append(name + ":")
    def newlabel(self, p="L"):
        self.nlabel += 1
        return f"{p}_{self.nlabel}"
    def text(self):
        return "\n".join(self.lines) + "\n"

def vr(b, n=1):
    return f"v{b}" if n == 1 else f"v[{b}:{b+n-1}]"
def sr(b, n=1):
    return f"s{b}" if n == 1 else f"s[{b}:{b+n-1}]"
def ar(b, n=1):
    return f"a{b}" if n == 1 else f"a[{b}:{b+n-1}]"

def kernel_header(name, grid, block, lds, comments=()):
    out = []
    for c in comments:
        out.append("; " + c)
    out.append(f"; @launch grid=({grid[0]},{grid[1]},{grid[2]}) block=({block[0]},{block[1]},{block[2]}) lds={lds}")
    out.append('.amdgcn_target "amdgcn-amd-amdhsa--gfx950"')
    out.append(".text")
    out.append(f".globl {name}")
    out.append(".p2align 8")
    out.append(f".type {name},@function")
    out.append(f"{name}:")
    return "\n".join(out)

def kernel_footer(name, nvgpr, nsgpr, accum, kernarg):
    return f""".section .rodata,"a"
.p2align 6
.amdhsa_kernel {name}
  .amdhsa_next_free_vgpr {nvgpr}
  .amdhsa_next_free_sgpr {nsgpr}
  .amdhsa_accum_offset {accum}
  .amdhsa_group_segment_fixed_size 0
  .amdhsa_kernarg_size {kernarg}
  .amdhsa_user_sgpr_count 2
  .amdhsa_user_sgpr_kernarg_segment_ptr 1
  .amdhsa_system_sgpr_workgroup_id_x 1
.end_amdhsa_kernel
"""
```

```python
import re

TRANS = ("v_exp_f32","v_log_f32","v_rcp_f32","v_rsq_f32","v_sqrt_f32","v_sin_f32","v_cos_f32","v_rcp_iflag_f32")

def regs(tok):
    tok = tok.strip()
    neg = tok.lstrip("-")
    if neg.startswith("abs(") or neg.startswith("|"):
        neg = neg.replace("abs(", "").replace(")", "").replace("|", "")
    tok = neg
    m = re.fullmatch(r"([vsa])\[(\d+):(\d+)\]", tok)
    if m: return {(m.group(1), i) for i in range(int(m.group(2)), int(m.group(3))+1)}
    m = re.fullmatch(r"([vsa])(\d+)", tok)
    if m: return {(m.group(1), int(m.group(2)))}
    if tok == "vcc": return {("s","vcc_lo"),("s","vcc_hi")}
    if tok in ("vcc_lo","vcc_hi"): return {("s",tok)}
    if tok == "exec": return {("s","exec_lo"),("s","exec_hi")}
    if tok in ("exec_lo","exec_hi"): return {("s",tok)}
    if tok == "m0": return {("s","m0")}
    return set()

class Ins:
    def __init__(self, line):
        self.line = line
        code = line.split(";")[0].split("//")[0].strip()
        self.code = code
        self.op = None
        self.islabel = code.endswith(":")
        self.isdir = code.startswith(".")
        if not code or self.islabel or self.isdir: return
        parts = code.split(None, 1)
        self.op = parts[0]
        rest = parts[1] if len(parts) > 1 else ""
        ops = []; depth = 0; cur = ""
        for ch in rest:
            if ch in "[(": depth += 1
            if ch in "])": depth -= 1
            if ch == "," and depth == 0:
                ops.append(cur.strip()); cur = ""
            else: cur += ch
        if cur.strip(): ops.append(cur.strip())
        mods = ""
        if ops:
            sp = ops[-1].split()
            ops[-1] = sp[0]; mods = " ".join(sp[1:])
        self.ops = ops; self.mods = mods
        op = self.op
        self.mfma = op.startswith("v_mfma")
        self.valu = op.startswith("v_") and not self.mfma
        self.trans = any(op.startswith(t) for t in TRANS)
        self.dpp = "_dpp" in op or "row_" in mods or "quad_perm" in mods
        self.perml = op.startswith("v_permlane")
        self.vmem = op.startswith(("buffer_","global_","flat_"))
        self.ds = op.startswith("ds_")
        self.salu = op.startswith("s_")
        R = [regs(o) for o in ops]
        self.w = set(); self.r = set()
        if self.mfma:
            self.w = R[0]; self.srcA = R[1]; self.srcB = R[2]; self.srcC = R[3] if len(R) > 3 else set()
            self.r = self.srcA | self.srcB | self.srcC
        elif self.valu:
            if self.perml:
                self.w = R[0] | R[1]; self.r = R[0] | R[1]
            elif op.startswith("v_cmp"):
                self.w = R[0]; self.r = set().union(*R[1:])
                if op.startswith("v_cmpx"): self.w |= regs("exec")
            elif op.startswith(("v_add_co","v_sub_co","v_addc_co","v_subb_co","v_subrev_co")):
                self.w = R[0] | R[1]; self.r = set().union(*R[2:])
            elif op.startswith(("v_readlane","v_readfirstlane")):
                self.w = R[0]; self.r = set().union(*R[1:])
            else:
                self.w = R[0]; self.r = set().union(*R[1:]) if len(R) > 1 else set()
                if op.startswith(("v_fmac","v_mac","v_writelane")): self.r |= R[0]
                if op.startswith("v_cndmask") and len(ops) == 3: self.r |= regs("vcc")
                if self.dpp: self.r |= R[0] if False else set()
        elif self.vmem:
            if "load" in op:
                self.w = R[0]; self.r = set().union(*R[1:])
            elif "store" in op:
                if op.startswith("global_"):
                    self.r = set().union(*R); self.data = R[1]
                else:
                    self.r = set().union(*R); self.data = R[0]
            elif "atomic" in op:
                self.r = set().union(*R)
                if "sc0" in mods: self.w = R[0]
            self.wide_store = "store" in op and ("x4" in op or "x3" in op)
        elif self.ds:
            if op.startswith("ds_read") or "_rtn" in op or op.startswith(("ds_bpermute","ds_permute","ds_swizzle")):
                self.w = R[0]; self.r = set().union(*R[1:]) if len(R) > 1 else set()
            else:
                self.r = set().union(*R)
        elif self.salu:
            if op in ("s_nop","s_waitcnt","s_barrier","s_sleep","s_endpgm","s_branch","s_setprio") or op.startswith("s_cbranch"):
                pass
            elif op.startswith("s_cmp") or op.startswith("s_bitcmp"):
                self.r = set().union(*R) if R else set()
            else:
                self.w = R[0] if R else set(); self.r = set().union(*R[1:]) if len(R) > 1 else set()
                if "saveexec" in op: self.w |= regs("exec"); self.r |= regs("exec")
    def states(self):
        if self.op == "s_nop": return int(self.ops[0], 0) + 1
        return 1

def vset(s): return {x for x in s if x[0] in ("v","a")}
def sset(s): return {x for x in s if x[0] == "s"}

def need(p, c):
    n = 0
    if p.op is None or c.op is None: return 0
    pv = vset(p.w); ps = sset(p.w)
    cr = c.r; cw = c.w
    if p.valu:
        if pv:
            if c.valu and c.dpp and (pv & regs(c.ops[1]) if len(c.ops) > 1 else False): n = max(n, 2)
            if c.valu and c.perml and (pv & cr): n = max(n, 2)
            if c.valu and c.op.startswith(("v_readlane","v_readfirstlane")) and (pv & cr): n = max(n, 1)
            if c.mfma and (pv & cr): n = max(n, 2)
            if p.trans and c.valu and not c.trans and (pv & cr): n = max(n, 1)
            if p.trans and (c.mfma) and (pv & cr): n = max(n, 2)
        if ps:
            if c.valu and (ps & cr):
                n = max(n, 4 if c.op.startswith(("v_readlane","v_writelane")) else 2)
            if c.vmem and (ps & cr): n = max(n, 5)
            if ("s","exec_lo") in ps:
                if c.valu and c.dpp: n = max(n, 5)
                if c.mfma: n = max(n, 4)
                if c.valu and c.op.startswith(("v_readlane","v_readfirstlane","v_writelane","v_permlane")): n = max(n, 4)
    if p.mfma:
        D = p.w
        if c.mfma:
            if c.srcC & D:
                if c.srcC == D and c.w == D: n = max(n, 0)
                elif c.srcC == D: n = max(n, 0)
                else: n = max(n, 6)
            if (c.srcA | c.srcB) & D: n = max(n, 8)
            if (c.w & D) and not (c.srcC == D): n = max(n, 8)
        elif c.valu:
            if (cr | cw) & D: n = max(n, 8)
            if cw & p.srcC: n = max(n, 3)
        elif c.vmem or c.ds:
            if (cr | cw) & D: n = max(n, 8)
    if p.vmem and getattr(p, "wide_store", False):
        if (c.valu or c.mfma) and (vset(cw) & p.data): n = max(n, 2)
        elif (c.vmem or c.ds) and (vset(cw) & p.data): n = max(n, 1)
    return n

def fix(text, verbose=False):
    lines = text.split("\n")
    out = []
    window = []
    ninserted = 0
    for line in lines:
        ins = Ins(line)
        if ins.op is None:
            out.append(line)
            continue
        pad = 0
        dist = 0
        for p in reversed(window):
            req = need(p, ins)
            if req > dist: pad = max(pad, req - dist)
            dist += p.states()
            if dist >= 12: break
        if pad > 0 and ins.op != "s_nop":
            nop = f"s_nop {pad-1}"
            out.append(nop + "    ; hazard"); window.append(Ins(nop)); ninserted += 1
        out.append(line)
        window.append(ins)
        if len(window) > 24: window.pop(0)
    if verbose: print(f"hazard pass inserted {ninserted} s_nop")
    return "\n".join(out)
```

```python
import sys
from asmgen import Asm
import hazard

NAME = "sequential_preLN__gqa_block_cached__dense_activation_silu__decode_kernel"

WS_E      = 0x000000
WS_QFLAG  = 0x001000
WS_STAT   = 0x002000
WS_HBOX   = 0x008000
WS_QBOX   = 0x010000
WS_H2     = 0x040000
WS_H3     = 0x140000
WS_H4     = 0x240000
WS_H5     = 0x5C0000
WS_END    = 0x7C0000
WS_DBG    = 0x800000
WS_SIZE   = 0x1000000

L_ACCQ  = 0x000
L_ACC2  = 0x200
L_ACC3  = 0x300
L_ACC4  = 0x380
L_ACC5  = 0x480
L_GATE  = 0x500
L_PFLAG = 0x510
L_QCNT  = 0x520
L_QRDY  = 0x524
L_SCNT  = 0x528
L_STAT  = 0x540
L_ZEND  = 0x800
L_Q     = 0x800
L_P     = 0x1000
LDS_SIZE = 0x5000

TAGMASK = 0x3FF
LOG2E = 1.4426950408889634
import struct
def f2u(x): return struct.unpack("<I", struct.pack("<f", x))[0]

class G:
    def __init__(self, cfg):
        self.a = Asm(); self.cfg = cfg; self.out = []
    def __call__(self, s): self.a(s)
    def label(self, s): self.a.label(s)
    def nl(self, p): return self.a.newlabel(p)
    def vm_reset(self): self.out = []
    def vm(self, tag): self.out.append(tag)
    def wait(self, tag):
        if tag not in self.out: return
        idx = max(i for i, t in enumerate(self.out) if t == tag)
        n = len(self.out) - 1 - idx
        assert n <= 63
        self(f"s_waitcnt vmcnt({n})")
        self.out = self.out[idx+1:]
    def throttle(self, T):
        if len(self.out) >= T:
            self(f"s_waitcnt vmcnt({T-1})")
            self.out = self.out[len(self.out)-(T-1):] if T > 1 else []
    def wait_all(self):
        self("s_waitcnt vmcnt(0)"); self.out = []

def vr(b, n=1): return f"v{b}" if n == 1 else f"v[{b}:{b+n-1}]"
def sr(b, n=1): return f"s{b}" if n == 1 else f"s[{b}:{b+n-1}]"

S_WG = 2; S_W = 3
S_X, S_K, S_V, S_WQ, S_WO, S_BX, S_W1, S_W2 = 16, 18, 20, 22, 24, 26, 28, 30
S_OUT, S_DBG, S_WS = 32, 34, 36
SRD_A, SRD_B, SRD_C, SRD_WS = 40, 44, 48, 52
SRD_D = 56
S_T0 = 60
S_NONCE = 80
S_P0, S_P1 = 81, 82
S_MASKB = 84
S_SPIN = 86
S_TAGM = 87
S_B, S_HKV, S_S, S_PAIR = 88, 89, 90, 91
S_EX = 92
S_ST = 94
S_KAP, S_RHO = 96, 97
S_E = 98

def srd(g, dst, base, nbytes, add=None):
    if add is None:
        g(f"s_mov_b32 s{dst}, s{base}")
        g(f"s_mov_b32 s{dst+1}, s{base+1}")
    else:
        g(f"s_add_u32 s{dst}, s{base}, s{add}")
        g(f"s_addc_u32 s{dst+1}, s{base+1}, 0")
    g(f"s_mov_b32 s{dst+2}, {hex(nbytes)}")
    g(f"s_mov_b32 s{dst+3}, 0x20000")

def stamp(g, idx):
    if not g.cfg.get("stamps"): return
    g(f"s_memrealtime s[{S_ST}:{S_ST+1}]")
    g("s_waitcnt lgkmcnt(0)")
    g(f"v_writelane_b32 v3, s{S_ST}, {idx}")

def dump_stamps(g):
    if not g.cfg.get("stamps"): return
    g(f"s_lshl_b32 s{S_T0}, s{S_WG}, 3")
    g(f"s_add_u32 s{S_T0}, s{S_T0}, s{S_W}")
    g(f"s_lshl_b32 s{S_T0}, s{S_T0}, 6")
    g(f"s_add_u32 s{S_T0}, s{S_T0}, {hex(WS_DBG)}")
    g(f"v_lshlrev_b32 v2, 2, v1")
    g(f"v_cmp_gt_u32 vcc, 16, v1")
    g(f"s_and_saveexec_b64 s[{S_EX}:{S_EX+1}], vcc")
    g(f"buffer_store_dword v3, v2, s[{SRD_WS}:{SRD_WS+3}], s{S_T0} offen")
    g(f"s_mov_b64 exec, s[{S_EX}:{S_EX+1}]")

def lds_spin(g, addr_v, want, name):
    L = g.nl("L_spin_" + name); D = g.nl("L_done_" + name)
    g(f"s_mov_b32 s{S_SPIN}, 0")
    g.label(L)
    g(f"ds_read_b32 v2, {addr_v}")
    g(f"s_add_u32 s{S_SPIN}, s{S_SPIN}, 1")
    g("s_waitcnt lgkmcnt(0)")
    g(f"v_readfirstlane_b32 s{S_T0}, v2")
    g(f"s_cmp_ge_u32 s{S_T0}, {want}")
    g(f"s_cbranch_scc1 {D}")
    g(f"s_cmp_gt_u32 s{S_SPIN}, {g.cfg['spin_lds']}")
    g(f"s_cbranch_scc1 {D}")
    g("s_sleep 1")
    g(f"s_branch {L}")
    g.label(D)

def tags_apply(g, base, n4=1):
    for q in range(n4):
        for r in range(4):
            g(f"v_bfi_b32 v{base+4*q+r}, s{S_TAGM}, v{4+r}, v{base+4*q+r}")

def tags_check(g, base, nq, acc):
    first = True
    for q in range(nq):
        for r in range(4):
            x = base + 4*q + r
            if first:
                g(f"v_xor_b32 v{acc}, v{x}, v{4+r}"); first = False
            else:
                g(f"v_bitop3_b32 v{acc}, v{acc}, v{x}, v{4+r} bitop3:0xf6")
    g(f"v_and_b32 v{acc}, s{S_TAGM}, v{acc}")
    g(f"v_cmp_ne_u32 vcc, 0, v{acc}")

def poll_gather(g, name, issue, nq, base, acc, first_sleep, exec_mask=None):
    L = g.nl("L_poll_" + name); D = g.nl("L_pdone_" + name)
    g(f"s_mov_b32 s{S_SPIN}, 0")
    if first_sleep:
        fs = first_sleep
        while fs > 0:
            g(f"s_sleep {min(fs,127)}"); fs -= min(fs, 127)
    if exec_mask is not None:
        g(f"s_mov_b64 exec, {exec_mask}")
    g.label(L)
    issue()
    g(f"s_add_u32 s{S_SPIN}, s{S_SPIN}, 1")
    g("s_waitcnt vmcnt(0)")
    tags_check(g, base, nq, acc)
    g(f"s_cbranch_vccz {D}")
    g(f"s_cmp_gt_u32 s{S_SPIN}, {g.cfg['spin_glb']}")
    g(f"s_cbranch_scc1 {D}")
    if g.cfg.get("poll_sleep", 0):
        g(f"s_sleep {g.cfg['poll_sleep']}")
    g(f"s_branch {L}")
    g.label(D)
    if exec_mask is not None:
        g("s_mov_b64 exec, -1")
    g.vm_reset()

def halve4(g, v, op="add"):
    o = "v_add_f32" if op == "add" else "v_max_f32"
    g(f"v_permlane32_swap_b32 v{v}, v{v+1}")
    g(f"v_permlane32_swap_b32 v{v+2}, v{v+3}")
    g(f"{o} v{v}, v{v}, v{v+1}")
    g(f"{o} v{v+2}, v{v+2}, v{v+3}")
    g(f"v_permlane16_swap_b32 v{v}, v{v+2}")
    g(f"{o} v{v}, v{v}, v{v+2}")

def allreduce_hi(g, x, t, op):
    g(f"v_mov_b32 v{t}, v{x}")
    g(f"v_permlane16_swap_b32 v{x}, v{t}")
    g(f"{op} v{x}, v{x}, v{t}")
    g(f"v_mov_b32 v{t}, v{x}")
    g(f"v_permlane32_swap_b32 v{x}, v{t}")
    g(f"{op} v{x}, v{x}, v{t}")

def dpp_acc(g, x, op, ctrl):
    g(f"{op}_dpp v{x}, v{x}, v{x} {ctrl} row_mask:0xf bank_mask:0xf")

def bf16r(g, dst, src, tmp=None):
    g(f"v_cvt_pk_bf16_f32 v{dst}, v{src}, v{src}")
    g(f"v_lshlrev_b32 v{dst}, 16, v{dst}")

def build_sel(g, base, lane_v, t0, t1):
    g(f"v_and_b32 v{t0}, 7, v{lane_v}")
    g(f"v_and_b32 v{t1}, 1, v{lane_v}")
    g(f"v_cmp_eq_u32 s[{S_T0}:{S_T0+1}], 1, v{t1}")
    g(f"v_lshrrev_b32 v{t0}, 1, v{t0}")
    for par in range(2):
        lo = 0x0c0c0000 | ((2*par+1) << 8) | (2*par)
        hi = ((2*par+1) << 24) | ((2*par) << 16) | 0x0c0c
        g(f"v_mov_b32 v{t1}, {hex(lo)}")
        g(f"v_mov_b32 v{base+8}, {hex(hi)}")
        g(f"v_cndmask_b32 v{t1}, v{t1}, v{base+8}, s[{S_T0}:{S_T0+1}]")
        for w4 in range(4):
            g(f"v_cmp_eq_u32 vcc, {w4}, v{t0}")
            g(f"v_mov_b32 v{base+8}, 0x0c0c0c0c")
            g(f"v_cndmask_b32 v{base+2*w4+par}, v{base+8}, v{t1}, vcc")

def sel_perm(g, dst, pk, selbase, par):
    for w4 in range(4):
        g(f"v_perm_b32 v{dst+w4}, v{pk}, v{pk}, v{selbase+2*w4+par}")

def make_tags(g):
    g("v_readfirstlane_b32 s%d, v2" % S_E)
    N = S_NONCE
    g(f"s_add_u32 s{N}, s{S_E}, 1")
    t = S_T0
    g(f"s_and_b32 s{t}, s{N}, {TAGMASK}")
    g(f"v_mov_b32 v4, s{t}")
    g(f"s_mul_i32 s{t}, s{N}, 3\ns_lshr_b32 s{t+1}, s{N}, 10\ns_add_u32 s{t}, s{t}, s{t+1}\ns_and_b32 s{t}, s{t}, {TAGMASK}")
    g(f"v_mov_b32 v5, s{t}")
    g(f"s_mul_i32 s{t}, s{N}, 5\ns_lshr_b32 s{t+1}, s{N}, 20\ns_add_u32 s{t}, s{t}, s{t+1}\ns_and_b32 s{t}, s{t}, {TAGMASK}")
    g(f"v_mov_b32 v6, s{t}")
    g(f"s_mul_i32 s{t}, s{N}, 7\ns_lshr_b32 s{t+1}, s{N}, 15\ns_mul_i32 s{t+1}, s{t+1}, 3\ns_add_u32 s{t}, s{t}, s{t+1}\ns_and_b32 s{t}, s{t}, {TAGMASK}")
    g(f"v_mov_b32 v7, s{t}")
    g(f"s_mov_b32 s{S_TAGM}, {TAGMASK}")
```

```python
import sys
from kgen import *

def prologue(g):
    cfg = g.cfg
    g(f"s_cmp_ge_u32 s{S_WG}, 256")
    g("s_cbranch_scc1 L_end")
    g(f"s_load_dwordx16 s[{S_X}:{S_X+15}], s[0:1], 0")
    g(f"s_load_dwordx4 s[{S_OUT}:{S_OUT+3}], s[0:1], 64")
    g(f"s_load_dwordx2 s[{S_WS}:{S_WS+1}], s[0:1], 80")
    g("s_getpc_b64 s[4:5]")
    g.label("L_pc")
    g("v_lshrrev_b32 v8, 6, v0")
    g("v_and_b32 v1, 63, v0")
    g(f"s_mov_b32 s{SRD_D}, s4")
    g(f"s_mov_b32 s{SRD_D+1}, s5")
    g(f"s_mov_b32 s{SRD_D+2}, L_code_end-L_pc")
    g(f"s_mov_b32 s{SRD_D+3}, 0x20000")
    g(f"v_readfirstlane_b32 s{S_W}, v8")
    g("v_lshlrev_b32 v9, 6, v0")
    if cfg.get("prefetch", 1):
        g(f"buffer_load_dword v255, v9, s[{SRD_D}:{SRD_D+3}], 0 offen"); g.vm("pf")
    g("v_lshlrev_b32 v9, 2, v0")
    g("v_mov_b32 v8, 0")
    g("ds_write_b32 v9, v8")
    g(f"s_mov_b32 s{S_MASKB}, 0xff00ff00")
    g(f"s_mov_b32 s{S_MASKB+1}, 0xff00ff00")
    g("v_mov_b32 v3, 0")
    g("s_waitcnt lgkmcnt(0)")
    srd(g, SRD_WS, S_WS, WS_SIZE if cfg.get("stamps") or cfg.get("dump") else WS_END)
    g("v_mov_b32 v9, 0")
    g(f"buffer_load_dword v2, v9, s[{SRD_WS}:{SRD_WS+3}], 0 offen sc1"); g.vm("E")
    stamp(g, 0)
    g(f"s_and_b32 s{S_PAIR}, s{S_WG}, 7")
    g(f"s_lshr_b32 s{S_S}, s{S_WG}, 3")
    g(f"s_lshr_b32 s{S_B}, s{S_PAIR}, 2")
    g(f"s_and_b32 s{S_HKV}, s{S_PAIR}, 3")
    g(f"s_cmp_ge_u32 s{S_W}, 4")
    g("s_cbranch_scc1 L_kw")

def vw_path(g):
    cfg = g.cfg
    T = S_T0
    SEL = 8
    srd(g, SRD_A, S_X, 4096)
    srd(g, SRD_B, S_WQ, 0x800000)
    XS = 128
    XA = 144
    WQ = 32
    g("v_and_b32 v16, 15, v1")
    g("v_lshrrev_b32 v17, 4, v1")
    g("v_lshlrev_b32 v18, 6, v1")
    for i in range(4):
        g(f"buffer_load_dwordx4 v[{XS+4*i}:{XS+4*i+3}], v18, s[{SRD_A}:{SRD_A+3}], 0 offen offset:{16*i}"); g.vm("xs")
    g(f"s_and_b32 s{T}, s{S_WG}, 3")
    g(f"s_lshl_b32 s{T}, s{T}, 8")
    g(f"s_lshl_b32 s{T+1}, s{S_W}, 6")
    g(f"s_add_u32 s{T}, s{T}, s{T+1}")
    g("v_lshrrev_b32 v19, 3, v16")
    g("v_lshlrev_b32 v20, 11, v19")
    g("v_lshlrev_b32 v21, 5, v17")
    g("v_add_u32 v20, v20, v21")
    g(f"s_lshl_b32 s{T+1}, s{T}, 1")
    g(f"v_add_u32 v20, s{T+1}, v20")
    for i in range(2):
        g(f"buffer_load_dwordx4 v[{XA+4*i}:{XA+4*i+3}], v20, s[{SRD_A}:{SRD_A+3}], 0 offen offset:{16*i}"); g.vm("xa")
    g(f"s_lshr_b32 s{T+2}, s{S_WG}, 5")
    g(f"s_lshl_b32 s{T+2}, s{T+2}, 3")
    g(f"s_add_u32 s{S_KAP}, s{T+2}, s{S_PAIR}")
    g("v_lshlrev_b32 v21, 11, v19")
    g("v_lshlrev_b32 v22, 3, v17")
    g("v_add_u32 v21, v21, v22")
    g(f"s_lshl_b32 s{T+2}, s{S_KAP}, 5")
    g(f"v_add_u32 v21, s{T+2}, v21")
    g(f"buffer_load_dwordx2 v[120:121], v21, s[{SRD_A}:{SRD_A+3}], 0 offen"); g.vm("xr")
    g("v_lshlrev_b32 v21, 4, v17")
    g("v_add_u32 v21, v21, v19")
    g(f"v_add_u32 v21, s{T}, v21")
    g("v_lshlrev_b32 v21, 13, v21")
    g("v_and_b32 v22, 7, v16")
    g("v_lshlrev_b32 v22, 4, v22")
    g("v_add_u32 v21, v21, v22")
    g(f"s_lshr_b32 s{T+2}, s{S_WG}, 2")
    g(f"s_lshl_b32 s{T+2}, s{T+2}, 7")
    g(f"v_add_u32 v21, s{T+2}, v21")
    for m in range(8):
        g(f"s_mov_b32 s{T+3}, {m*16384}")
        g(f"buffer_load_dwordx4 v[{WQ+4*m}:{WQ+4*m+3}], v21, s[{SRD_B}:{SRD_B+3}], s{T+3} offen nt"); g.vm("wq")
    g("s_barrier")
    build_sel(g, SEL, 1, 17, 18)
    g("v_and_b32 v16, 15, v1")
    g("v_lshrrev_b32 v17, 4, v1")
    g.wait("xs")
    g_wait_E = True
    make_tags_from(g, 2)
    F = 152
    for i in range(16):
        g(f"v_lshlrev_b32 v{F+2*i}, 16, v{XS+i}")
        g(f"v_and_b32 v{F+2*i+1}, 0xffff0000, v{XS+i}")
    g(f"v_add_f32 v22, v{F}, v{F+1}")
    for i in range(2, 32, 2):
        g(f"v_add_f32 v23, v{F+i}, v{F+i+1}")
        g("v_add_f32 v22, v22, v23")
    def red32(x):
        for c in ("row_ror:8", "row_ror:4", "row_ror:2", "row_ror:1"):
            dpp_acc(g, x, "v_add_f32", c)
        g(f"v_mov_b32 v23, v{x}")
        g(f"v_permlane16_swap_b32 v{x}, v23")
        g(f"v_add_f32 v{x}, v{x}, v23")
    red32(22)
    g("v_mul_f32 v22, 0x3a800000, v22")
    for i in range(32):
        g(f"v_sub_f32 v{F+i}, v{F+i}, v22")
    g(f"v_mul_f32 v24, v{F}, v{F}")
    for i in range(1, 32):
        g(f"v_fmac_f32 v24, v{F+i}, v{F+i}")
    red32(24)
    g("v_mul_f32 v24, 0x3a800000, v24")
    g(f"v_readlane_b32 s{S_P0}, v22, 0")
    g(f"v_readlane_b32 s{S_P1}, v22, 32")
    bf16r(g, 22, 22)
    bf16r(g, 24, 24)
    g(f"v_add_f32 v24, {hex(f2u(1e-5))}, v24")
    bf16r(g, 24, 24)
    sqrt_exact(g, 25, 24, 26, 27)
    bf16r(g, 25, 25)
    g(f"v_readlane_b32 s{T}, v22, 0")
    g(f"v_readlane_b32 s{T+1}, v22, 32")
    g(f"v_readlane_b32 s{T+2}, v25, 0")
    g(f"v_readlane_b32 s{T+3}, v25, 32")
    g(f"v_mov_b32 v22, s{T}\nv_mov_b32 v23, s{T+1}")
    g(f"v_cndmask_b32 v22, v22, v23, s[{S_MASKB}:{S_MASKB+1}]")
    g(f"v_mov_b32 v24, s{T+2}\nv_mov_b32 v23, s{T+3}")
    g(f"v_cndmask_b32 v24, v24, v23, s[{S_MASKB}:{S_MASKB+1}]")
    g("v_rcp_f32 v25, v24")
    g.wait("xa")
    for m in range(8):
        g(f"v_lshlrev_b32 v26, 16, v{XA+m}")
        g(f"v_and_b32 v27, 0xffff0000, v{XA+m}")
        g("v_sub_f32 v26, v26, v22")
        g("v_sub_f32 v27, v27, v22")
        g("v_cvt_pk_bf16_f32 v28, v26, v27")
        g("v_lshlrev_b32 v26, 16, v28")
        g("v_and_b32 v27, 0xffff0000, v28")
        for x in (26, 27):
            g(f"v_mul_f32 v28, v{x}, v25")
            g(f"v_fma_f32 v29, -v28, v24, v{x}")
            g(f"v_fma_f32 v{x}, v29, v25, v28")
        g(f"v_cvt_pk_bf16_f32 v{XA+m}, v26, v27")
    stamp(g, 1)
    D0, D1 = 64, 68
    for r in range(8): g(f"v_mov_b32 v{D0+r}, 0")
    g.wait("wq")
    stamp(g, 2)
    for m in range(8):
        A0 = 96 + 8*(m & 1); A1 = A0 + 4
        sel_perm(g, A0, XA+m, SEL, 0)
        sel_perm(g, A1, XA+m, SEL, 1)
        g(f"v_mfma_f32_16x16x32_bf16 v[{D0}:{D0+3}], v[{A0}:{A0+3}], v[{WQ+4*m}:{WQ+4*m+3}], v[{D0}:{D0+3}]")
        g(f"v_mfma_f32_16x16x32_bf16 v[{D1}:{D1+3}], v[{A1}:{A1+3}], v[{WQ+4*m}:{WQ+4*m+3}], v[{D1}:{D1+3}]")
    g("v_lshrrev_b32 v22, 1, v17")
    g("v_lshlrev_b32 v22, 8, v22")
    g("v_and_b32 v23, 1, v17")
    g("v_lshlrev_b32 v23, 4, v23")
    g("v_add_u32 v22, v22, v23")
    g("v_and_b32 v23, 7, v1")
    g("v_lshlrev_b32 v23, 5, v23")
    g("v_add_u32 v22, v22, v23")
    for r in range(4):
        g(f"v_cndmask_b32 v{D0+r}, v{D0+r}, v{D1+r}, s[{S_MASKB}:{S_MASKB+1}]")
    for r in range(4):
        dpp_acc(g, D0+r, "v_add_f32", "row_ror:8")
    g(f"s_mov_b32 s{T}, 0x00ff00ff\ns_mov_b32 s{T+1}, 0x00ff00ff")
    g(f"s_mov_b64 exec, s[{T}:{T+1}]")
    for r in range(4):
        g(f"ds_add_f32 v22, v{D0+r} offset:{L_ACCQ + 4*r}")
    g("s_mov_b64 exec, 1")
    g("s_waitcnt lgkmcnt(0)")
    g(f"v_mov_b32 v23, {L_QCNT}\nv_mov_b32 v24, 1")
    g("ds_add_rtn_u32 v25, v23, v24")
    g("s_waitcnt lgkmcnt(0)")
    g(f"v_readfirstlane_b32 s{T}, v25")
    g("s_mov_b64 exec, -1")
    g(f"s_cmp_lg_u32 s{T}, 3")
    g("s_cbranch_scc1 L_vw_qdone")
    g("s_mov_b32 exec_hi, 0")
    g("v_lshlrev_b32 v22, 4, v1")
    g(f"ds_read_b128 v[24:27], v22 offset:{L_ACCQ}")
    g(f"s_lshr_b32 s{T}, s{S_WG}, 6")
    g(f"s_lshl_b32 s{T}, s{T}, 2")
    g(f"s_and_b32 s{T+1}, s{S_WG}, 3")
    g(f"s_add_u32 s{T}, s{T}, s{T+1}")
    g(f"s_lshl_b32 s{T}, s{T}, 12")
    g(f"s_lshr_b32 s{T+1}, s{S_WG}, 2")
    g(f"s_and_b32 s{T+1}, s{T+1}, 15")
    g(f"s_lshl_b32 s{T+1}, s{T+1}, 8")
    g(f"s_add_u32 s{T}, s{T}, s{T+1}")
    g(f"s_add_u32 s{T}, s{T}, {hex(WS_QBOX)}")
    g("v_lshrrev_b32 v23, 4, v1")
    g("v_lshlrev_b32 v23, 16, v23")
    g("v_and_b32 v28, 15, v1")
    g("v_lshlrev_b32 v28, 4, v28")
    g("v_add_u32 v23, v23, v28")
    g("s_waitcnt lgkmcnt(0)")
    g(f"buffer_store_dwordx4 v[24:27], v23, s[{SRD_WS}:{SRD_WS+3}], s{T} offen sc1")
    g("s_waitcnt vmcnt(0)")
    g("s_mov_b64 exec, 1")
    g(f"s_lshl_b32 s{T}, s{S_WG}, 2")
    g(f"s_add_u32 s{T}, s{T}, {hex(WS_QFLAG)}")
    g(f"v_mov_b32 v24, s{S_NONCE}\nv_mov_b32 v23, 0")
    g(f"buffer_store_dword v24, v23, s[{SRD_WS}:{SRD_WS+3}], s{T} offen sc1")
    g("s_mov_b64 exec, -1")
    g.label("L_vw_qdone")
    stamp(g, 3)
    VR = 128
    g(f"s_lshl_b32 s{T}, s{S_PAIR}, 22")
    g(f"s_lshl_b32 s{T+1}, s{S_S}, 17")
    g(f"s_add_u32 s{T}, s{T}, s{T+1}")
    srd(g, SRD_A, S_V, 0x20000, add=T)
    srd(g, SRD_B, S_WO, 0x800000)
    g(f"s_lshl_b32 s{T}, s{S_W}, 10")
    g("v_lshlrev_b32 v18, 4, v1")
    g(f"v_add_u32 v18, s{T}, v18")
    g(f"s_lshr_b32 s{T}, s{S_WG}, 4\ns_lshl_b32 s{T}, s{T}, 3\ns_add_u32 s{S_RHO}, s{T}, s{S_PAIR}")
    g(f"s_lshr_b32 s{T}, s{S_RHO}, 4")
    g(f"s_lshl_b32 s{T}, s{T}, 9")
    g(f"s_and_b32 s{T+1}, s{S_RHO}, 1\ns_lshl_b32 s{T+1}, s{T+1}, 6\ns_add_u32 s{T}, s{T}, s{T+1}")
    g(f"s_bfe_u32 s{T+1}, s{S_RHO}, 0x20002\ns_add_u32 s{T}, s{T}, s{T+1}")
    g(f"s_bfe_u32 s{T+1}, s{S_RHO}, 0x10001\ns_lshl_b32 s{T+1}, s{T+1}, 2\ns_add_u32 s{T}, s{T}, s{T+1}")
    g(f"s_lshl_b32 s{T}, s{T}, 11")
    g(f"s_bfe_u32 s{T+1}, s{S_WG}, 0x10003\ns_lshl_b32 s{T+1}, s{T+1}, 10\ns_add_u32 s{T}, s{T}, s{T+1}")
    g(f"s_lshl_b32 s{T+1}, s{S_W}, 8\ns_add_u32 s{T}, s{T}, s{T+1}")
    g("v_lshlrev_b32 v19, 18, v17")
    g("v_lshlrev_b32 v20, 4, v16")
    g("v_add_u32 v19, v19, v20")
    g(f"v_add_u32 v19, s{T}, v19")
    g(f"s_lshl_b32 s{T}, s{S_W}, 2\ns_add_u32 s{T}, s{T}, {L_GATE}")
    g(f"v_mov_b32 v20, s{T}")
    lds_spin(g, "v20", 1, "gate")
    stamp(g, 4)
    g.vm_reset()
    TV = cfg["TV"]
    for J in range(32):
        g.throttle(TV)
        off = J*4096
        g(f"s_mov_b32 s{T+3}, {off}")
        g(f"buffer_load_dwordx4 v[{VR+4*J}:{VR+4*J+3}], v18, s[{SRD_A}:{SRD_A+3}], s{T+3} offen nt"); g.vm(f"V{J//8}")
    WO = 32
    for m in range(8):
        g(f"s_mov_b32 s{T+3}, {m*16384}")
        g(f"buffer_load_dwordx4 v[{WO+4*m}:{WO+4*m+3}], v19, s[{SRD_B}:{SRD_B+3}], s{T+3} offen nt"); g.vm("wo")
    stamp(g, 5)
    srd(g, SRD_A, S_W1, 1024*3584*2)
    srd(g, SRD_B, S_W2, 1024*3584*2)
    g(f"s_mul_i32 s{T}, s{S_KAP}, {16*7168}")
    g(f"s_bfe_u32 s{T+1}, s{S_WG}, 0x20003\ns_mul_i32 s{T+1}, s{T+1}, {896*2}\ns_add_u32 s{T}, s{T}, s{T+1}")
    g(f"s_lshl_b32 s{T+1}, s{S_W}, 8\ns_add_u32 s{T}, s{T}, s{T+1}")
    g(f"s_mov_b32 s{T+1}, {4*7168}")
    g(f"v_mul_lo_u32 v21, v17, s{T+1}")
    g("v_lshlrev_b32 v20, 4, v16")
    g("v_add_u32 v21, v21, v20")
    g(f"v_add_u32 v21, s{T}, v21")
    g("v_add_u32 v22, 1024, v21")
    g(f"s_cmp_eq_u32 s{S_W}, 3")
    g(f"s_cselect_b32 s{T+1}, 0x40000000, 0")
    g(f"v_add_u32 v22, s{T+1}, v22")
    g(f"s_lshl_b32 s{T}, s{S_WG}, 15")
    g(f"s_lshl_b32 s{T+1}, s{S_W}, 8\ns_add_u32 s{T}, s{T}, s{T+1}")
    g("v_lshlrev_b32 v23, 13, v17")
    g("v_add_u32 v23, v23, v20")
    g(f"v_add_u32 v23, s{T}, v23")
    g(f"s_lshl_b32 s{T}, s{S_W}, 2\ns_add_u32 s{T}, s{T}, {L_PFLAG}")
    g(f"v_mov_b32 v20, s{T}")
    lds_spin(g, "v20", 1, "pflag")
    stamp(g, 6)
    O = 64
    for r in range(32): g(f"v_mov_b32 v{O+r}, 0")
    g(f"s_lshl_b32 s{T}, s{S_W}, 12\ns_add_u32 s{T}, s{T}, {L_P}")
    g("v_lshlrev_b32 v20, 4, v1")
    g(f"v_add_u32 v20, s{T}, v20")
    for blk in range(4):
        g(f"ds_read_b128 v[{112+4*(blk&1)}:{115+4*(blk&1)}], v20 offset:{blk*1024}") if blk < 2 else None
    g(f"s_mov_b32 s{T+4}, 0x05040100\ns_mov_b32 s{T+5}, 0x07060302")
    for blk in range(4):
        P = 112 + 4*(blk & 1)
        g.wait(f"V{blk}")
        if blk == 0: g("s_waitcnt lgkmcnt(1)")
        elif blk == 1: g("s_waitcnt lgkmcnt(1)")
        elif blk == 2: g("s_waitcnt lgkmcnt(1)")
        else: g("s_waitcnt lgkmcnt(0)")
        base = VR + 32*blk
        for w4 in range(4):
            B0 = 96 + 8*(w4 & 1)
            for par in range(2):
                for i4 in range(4):
                    g(f"v_perm_b32 v{B0+4*par+i4}, v{base+4*(2*i4+1)+w4}, v{base+4*(2*i4)+w4}, s{T+4+par}")
            for par in range(2):
                e = 2*w4 + par
                g(f"v_mfma_f32_16x16x32_bf16 v[{O+4*e}:{O+4*e+3}], v[{P}:{P+3}], v[{B0+4*par}:{B0+4*par+3}], v[{O+4*e}:{O+4*e+3}]")
        if blk + 2 < 4:
            g(f"ds_read_b128 v[{P}:{P+3}], v20 offset:{(blk+2)*1024}")
    stamp(g, 7)
    W1R, W2R = 128, 160
    for bi, va in enumerate(("v21", "v22")):
        for m in range(4):
            g(f"s_mov_b32 s{T+3}, {m*7168}")
            g(f"buffer_load_dwordx4 v[{W1R+16*bi+4*m}:{W1R+16*bi+4*m+3}], {va}, s[{SRD_A}:{SRD_A+3}], s{T+3} offen nt"); g.vm("w1")
    for bi in range(2):
        for m in range(4):
            g(f"buffer_load_dwordx4 v[{W2R+16*bi+4*m}:{W2R+16*bi+4*m+3}], v23, s[{SRD_B}:{SRD_B+3}], 0 offen offset:{m*2048 + bi*1024 if m*2048+bi*1024 < 4096 else 0} nt" if m*2048+bi*1024 < 4096 else
              f"s_mov_b32 s{T+3}, {m*2048}\nbuffer_load_dwordx4 v[{W2R+16*bi+4*m}:{W2R+16*bi+4*m+3}], v23, s[{SRD_B}:{SRD_B+3}], s{T+3} offen offset:{bi*1024} nt"); g.vm("w2")
    for e in range(4):
        for r in range(4):
            g(f"v_permlane32_swap_b32 v{O+4*e+r}, v{O+4*(e+4)+r}")
    for e in range(4):
        g(f"ds_write_b128 v20, v[{O+4*e}:{O+4*e+3}] offset:{e*1024}")
    g("s_waitcnt lgkmcnt(0)")
    g("s_barrier")
    stamp(g, 8)
    g(f"s_bfe_u32 s{T}, s{S_WG}, 0x10003\ns_lshl_b32 s{T}, s{T}, 5")
    g(f"s_lshl_b32 s{T+1}, s{S_W}, 3\ns_add_u32 s{T}, s{T}, s{T+1}\ns_lshl_b32 s{T}, s{T}, 14")
    g(f"s_lshl_b32 s{T+1}, s{S_RHO}, 7\ns_add_u32 s{T}, s{T}, s{T+1}\ns_add_u32 s{T}, s{T}, {hex(WS_H3)}")
    g("v_lshrrev_b32 v24, 1, v16\nv_lshlrev_b32 v24, 14, v24")
    g("v_lshrrev_b32 v25, 1, v17\nv_lshlrev_b32 v25, 6, v25\nv_add_u32 v24, v24, v25")
    g("v_and_b32 v25, 1, v16\nv_lshlrev_b32 v25, 5, v25\nv_add_u32 v24, v24, v25")
    g("v_and_b32 v25, 1, v17\nv_lshlrev_b32 v25, 4, v25\nv_add_u32 v24, v24, v25")
    g(f"v_add_u32 v24, s{T}, v24")
    g("v_lshrrev_b32 v25, 3, v16\nv_lshlrev_b32 v25, 7, v25\nv_lshlrev_b32 v26, 5, v17\nv_add_u32 v25, v25, v26")
    D = 64
    for r in range(4): g(f"v_mov_b32 v{D+r}, 0")
    g.wait("wo")
    g("s_barrier")
    stamp(g, 9)
    g(f"ds_read_b128 v[96:99], v25 offset:{L_ACC2}")
    g(f"ds_read_b128 v[100:103], v25 offset:{L_ACC2+16}")
    g("s_waitcnt lgkmcnt(0)")
    for i in range(4):
        g(f"v_cvt_pk_bf16_f32 v{104+i}, v{96+2*i}, v{97+2*i}")
    for m in range(8):
        A = 16+8 if False else (112 + 4*(m & 1))
        sel_perm(g, A, 104 + (m >> 1), SEL, m & 1)
        g(f"v_mfma_f32_16x16x32_bf16 v[{D}:{D+3}], v[{A}:{A+3}], v[{WO+4*m}:{WO+4*m+3}], v[{D}:{D+3}]")
    tags_apply(g, D)
    g(f"buffer_store_dwordx4 v[{D}:{D+3}], v24, s[{SRD_WS}:{SRD_WS+3}], 0 offen sc1"); g.vm("st3")
    stamp(g, 10)
    ZA, CA = 192, 200
    for r in range(16): g(f"v_mov_b32 v{ZA+r}, 0")
    g("v_mov_b32 v104, 0x3f803f80")
    sel_perm(g, 112, 104, SEL, 0)
    g(f"s_bfe_u32 s{T}, s{S_WG}, 0x20003\ns_mul_i32 s{T}, s{T}, 56")
    g(f"s_lshl_b32 s{T+1}, s{S_W}, 3\ns_add_u32 s{T}, s{T}, s{T+1}\ns_lshl_b32 s{T}, s{T}, 14")
    g(f"s_lshl_b32 s{T+1}, s{S_KAP}, 8\ns_add_u32 s{T}, s{T}, s{T+1}\ns_add_u32 s{T}, s{T}, {hex(WS_H4)}")
    g("v_lshrrev_b32 v26, 1, v16\nv_lshlrev_b32 v26, 14, v26")
    g("v_and_b32 v27, 1, v16\nv_lshlrev_b32 v27, 5, v27\nv_add_u32 v26, v26, v27")
    g("v_and_b32 v27, 1, v17\nv_lshlrev_b32 v27, 4, v27\nv_add_u32 v26, v26, v27")
    g(f"v_add_u32 v26, s{T}, v26")
    g("v_lshrrev_b32 v27, 1, v17\nv_lshlrev_b32 v27, 6, v27")
    g("v_add_u32 v28, v26, v27")
    g("v_add_u32 v29, 128, v26")
    g("v_add_u32 v27, 192, v26")
    g(f"v_cmp_le_u32 s[{T+6}:{T+7}], 32, v1")
    g(f"v_cndmask_b32 v29, v29, v27, s[{T+6}:{T+7}]")
    g("v_lshrrev_b32 v25, 3, v16\nv_lshlrev_b32 v25, 6, v25\nv_lshlrev_b32 v27, 4, v17\nv_add_u32 v25, v25, v27")
    g(f"v_mov_b32 v30, s{S_P0}\nv_mov_b32 v31, s{S_P1}")
    g(f"v_cndmask_b32 v30, v30, v31, s[{S_MASKB}:{S_MASKB+1}]")
    g.wait("w1")
    for bi in range(2):
        for m in range(4):
            g(f"v_mfma_f32_16x16x32_bf16 v[{CA+4*bi}:{CA+4*bi+3}], v[112:115], v[{W1R+16*bi+4*m}:{W1R+16*bi+4*m+3}], v[{CA+4*bi}:{CA+4*bi+3}]")
    g("s_barrier")
    stamp(g, 11)
    g(f"ds_read_b128 v[96:99], v25 offset:{L_ACC3}")
    g("v_lshlrev_b32 v100, 16, v120\nv_and_b32 v101, 0xffff0000, v120\nv_lshlrev_b32 v102, 16, v121\nv_and_b32 v103, 0xffff0000, v121")
    g("s_waitcnt lgkmcnt(0)")
    g("v_cvt_pk_bf16_f32 v104, v96, v97\nv_cvt_pk_bf16_f32 v105, v98, v99")
    g("v_lshlrev_b32 v96, 16, v104\nv_and_b32 v97, 0xffff0000, v104\nv_lshlrev_b32 v98, 16, v105\nv_and_b32 v99, 0xffff0000, v105")
    for r in range(4): g(f"v_add_f32 v{96+r}, v{96+r}, v{100+r}")
    g("v_cvt_pk_bf16_f32 v104, v96, v97\nv_cvt_pk_bf16_f32 v105, v98, v99")
    for m in range(4):
        A = 112 + 4*(m & 1)
        sel_perm(g, A, 104 + (m >> 1), SEL, m & 1)
        for bi in range(2):
            g(f"v_mfma_f32_16x16x32_bf16 v[{ZA+4*bi}:{ZA+4*bi+3}], v[{A}:{A+3}], v[{W1R+16*bi+4*m}:{W1R+16*bi+4*m+3}], v[{ZA+4*bi}:{ZA+4*bi+3}]")
    g("v_lshlrev_b32 v96, 16, v104\nv_and_b32 v97, 0xffff0000, v104\nv_lshlrev_b32 v98, 16, v105\nv_and_b32 v99, 0xffff0000, v105")
    for r in range(4): g(f"v_sub_f32 v{100+r}, v{96+r}, v30")
    g("v_add_f32 v106, v100, v101\nv_add_f32 v107, v102, v103\nv_add_f32 v106, v106, v107")
    g("v_mul_f32 v107, v100, v100\nv_fmac_f32 v107, v101, v101\nv_fmac_f32 v107, v102, v102\nv_fmac_f32 v107, v103, v103")
    allreduce_hi(g, 106, 108, "v_add_f32")
    allreduce_hi(g, 107, 108, "v_add_f32")
    g(f"v_mov_b32_dpp v108, v106 row_ror:8 row_mask:0xf bank_mask:0xf")
    g(f"v_mov_b32_dpp v109, v107 row_ror:8 row_mask:0xf bank_mask:0xf")
    MB = f"s[{S_MASKB}:{S_MASKB+1}]"
    g(f"v_cndmask_b32 v100, v106, v108, {MB}")
    g(f"v_cndmask_b32 v101, v107, v109, {MB}")
    g(f"v_cndmask_b32 v102, v108, v106, {MB}")
    g(f"v_cndmask_b32 v103, v109, v107, {MB}")
    Lnh = g.nl("L_nohbox")
    g(f"s_bfe_u32 s{T}, s{S_WG}, 0x20003\ns_or_b32 s{T}, s{T}, s{S_W}")
    g(f"s_cmp_lg_u32 s{T}, 0")
    g(f"s_cbranch_scc1 {Lnh}")
    g("v_lshrrev_b32 v108, 3, v16\nv_lshlrev_b32 v108, 12, v108\nv_lshlrev_b32 v109, 4, v17\nv_add_u32 v108, v108, v109")
    g(f"s_lshl_b32 s{T}, s{S_KAP}, 6\ns_add_u32 s{T}, s{T}, {hex(WS_HBOX)}")
    g(f"s_mov_b32 s{T+2}, 0x01010101\ns_mov_b32 s{T+3}, 0x01010101")
    tags_apply(g, 96)
    g(f"s_mov_b64 exec, s[{T+2}:{T+3}]")
    g(f"buffer_store_dwordx4 v[96:99], v108, s[{SRD_WS}:{SRD_WS+3}], s{T} offen sc1")
    g("s_mov_b64 exec, -1")
    g.label(Lnh)
    for bi in range(2):
        tags_apply(g, ZA+4*bi)
        for r in range(4):
            g(f"v_cndmask_b32 v{CA+4*bi+r}, v{CA+4*bi+r}, v{100+r}, s[{T+6}:{T+7}]")
        tags_apply(g, CA+4*bi)
    g(f"s_mov_b32 s{T+2}, -1\ns_mov_b32 s{T+3}, 0x00005555")
    g(f"buffer_store_dwordx4 v[{ZA}:{ZA+3}], v28, s[{SRD_WS}:{SRD_WS+3}], 0 offen sc1")
    g(f"s_mov_b64 exec, s[{T+2}:{T+3}]")
    g(f"buffer_store_dwordx4 v[{CA}:{CA+3}], v29, s[{SRD_WS}:{SRD_WS+3}], 0 offen sc1")
    g("s_mov_b64 exec, -1")
    Lnb = g.nl("L_noblk1")
    g(f"s_cmp_eq_u32 s{S_W}, 3")
    g(f"s_cbranch_scc1 {Lnb}")
    g(f"s_mov_b32 s{T}, {32*16384}")
    g(f"buffer_store_dwordx4 v[{ZA+4}:{ZA+7}], v28, s[{SRD_WS}:{SRD_WS+3}], s{T} offen sc1")
    g(f"s_mov_b64 exec, s[{T+2}:{T+3}]")
    g(f"buffer_store_dwordx4 v[{CA+4}:{CA+7}], v29, s[{SRD_WS}:{SRD_WS+3}], s{T} offen sc1")
    g("s_mov_b64 exec, -1")
    g.label(Lnb)
    stamp(g, 12)
    g(f"s_cmp_ge_u32 s{S_WG}, 224")
    g("s_cbranch_scc1 L_fin")
    g.vm_reset()
    g(f"s_lshl_b32 s{T}, s{S_W}, 18")
    g(f"s_lshl_b32 s{T+1}, s{S_WG}, 6\ns_add_u32 s{T}, s{T}, s{T+1}\ns_add_u32 s{T}, s{T}, {hex(WS_H5)}")
    g("v_lshlrev_b32 v24, 14, v16")
    g("v_lshlrev_b32 v25, 4, v17")
    g("v_add_u32 v24, v24, v25")
    g(f"v_add_u32 v24, s{T}, v24")
    g("v_lshrrev_b32 v25, 3, v16\nv_lshlrev_b32 v25, 6, v25\nv_lshlrev_b32 v26, 4, v17\nv_add_u32 v25, v25, v26")
    g("v_mov_b32 v27, 0")
    FA = 192
    for r in range(8): g(f"v_mov_b32 v{FA+r}, 0")
    g("s_waitcnt vmcnt(3)")
    g("s_barrier")
    stamp(g, 13)
    g(f"ds_read_b128 v[96:99], v25 offset:{L_ACC4}")
    g(f"ds_read_b128 v[100:103], v26 offset:{L_ACC4+128}")
    g(f"ds_read_b128 v[104:107], v27 offset:{L_ACC4+192}")
    g("s_waitcnt lgkmcnt(0)")
    g(f"v_cndmask_b32 v104, v104, v106, {MB}")
    g(f"v_cndmask_b32 v105, v105, v107, {MB}")
    g("v_mul_f32 v104, 0x3a800000, v104")
    g("v_mul_f32 v105, 0x3a800000, v105")
    g("v_fma_f32 v105, -v104, v104, v105")
    g("v_max_f32 v105, 0, v105")
    g("v_add_f32 v104, v104, v30")
    bf16r(g, 104, 104)
    bf16r(g, 105, 105)
    g(f"v_add_f32 v105, {hex(f2u(1e-5))}, v105")
    bf16r(g, 105, 105)
    g("v_sqrt_f32 v105, v105")
    bf16r(g, 105, 105)
    g("v_rcp_f32 v105, v105")
    for r in range(4):
        g(f"v_fma_f32 v{96+r}, -v104, v{100+r}, v{96+r}")
    for r in range(4):
        g(f"v_mul_f32 v{96+r}, v{96+r}, v105")
    g("v_cvt_pk_bf16_f32 v106, v96, v97\nv_cvt_pk_bf16_f32 v107, v98, v99")
    g("v_lshlrev_b32 v96, 16, v106\nv_and_b32 v97, 0xffff0000, v106\nv_lshlrev_b32 v98, 16, v107\nv_and_b32 v99, 0xffff0000, v107")
    for r in range(4): g(f"v_mul_f32 v{100+r}, {hex(f2u(-LOG2E))}, v{96+r}")
    for r in range(4): g(f"v_exp_f32 v{100+r}, v{100+r}")
    for r in range(4): g(f"v_add_f32 v{100+r}, 1.0, v{100+r}")
    for r in range(4): g(f"v_rcp_f32 v{100+r}, v{100+r}")
    for r in range(4): g(f"v_mul_f32 v{96+r}, v{96+r}, v{100+r}")
    g("v_cvt_pk_bf16_f32 v104, v96, v97\nv_cvt_pk_bf16_f32 v105, v98, v99")
    for m in range(4):
        A = 112 + 4*(m & 1)
        sel_perm(g, A, 104 + (m >> 1), SEL, m & 1)
        for bi in range(2):
            g(f"v_mfma_f32_16x16x32_bf16 v[{FA+4*bi}:{FA+4*bi+3}], v[{A}:{A+3}], v[{W2R+16*bi+4*m}:{W2R+16*bi+4*m+3}], v[{FA+4*bi}:{FA+4*bi+3}]")
    g(f"s_mov_b32 s{T}, {64*16384}")
    tags_apply(g, FA)
    g(f"buffer_store_dwordx4 v[{FA}:{FA+3}], v24, s[{SRD_WS}:{SRD_WS+3}], 0 offen sc1")
    tags_apply(g, FA+4)
    g(f"buffer_store_dwordx4 v[{FA+4}:{FA+7}], v24, s[{SRD_WS}:{SRD_WS+3}], s{T} offen sc1")
    stamp(g, 14)
    g("s_branch L_final")

def sqrt_exact(g, dst, src, t0, t1):
    g(f"v_sqrt_f32 v{dst}, v{src}")
    g(f"v_rcp_f32 v{t0}, v{dst}")
    g(f"v_fma_f32 v{t1}, -v{dst}, v{dst}, v{src}")
    g(f"v_mul_f32 v{t0}, 0.5, v{t0}")
    g(f"v_fma_f32 v{dst}, v{t1}, v{t0}, v{dst}")

def make_tags_from(g, vreg):
    make_tags(g)

def kw_path(g):
    cfg = g.cfg
    T = S_T0
    g.label("L_kw")
    g.out = ["pf", "E"] if cfg.get("prefetch", 1) else ["E"]
    KW = 99
    g(f"s_sub_u32 s{KW}, s{S_W}, 4")
    g(f"s_lshl_b32 s{T}, s{S_PAIR}, 22")
    g(f"s_lshl_b32 s{T+1}, s{S_S}, 17")
    g(f"s_add_u32 s{T}, s{T}, s{T+1}")
    srd(g, SRD_A, S_K, 0x20000, add=T)
    g("v_and_b32 v16, 15, v1")
    g("v_lshrrev_b32 v17, 4, v1")
    g("v_and_b32 v18, 3, v16\nv_lshlrev_b32 v18, 4, v18")
    g("v_bfe_u32 v19, v16, 2, 1\nv_add_u32 v18, v18, v19")
    g(f"s_lshl_b32 s{T}, s{KW}, 2\nv_add_u32 v18, s{T}, v18\nv_lshlrev_b32 v18, 8, v18")
    g("v_lshrrev_b32 v19, 3, v16\nv_lshlrev_b32 v19, 6, v19\nv_add_u32 v18, v18, v19")
    g("v_lshlrev_b32 v19, 4, v17\nv_add_u32 v18, v18, v19")
    KR = 128
    TK = cfg["TK"]
    g(f"s_lshl_b32 s{T+4}, s{S_HKV}, 8\ns_add_u32 s{T+4}, s{T+4}, {hex(WS_QFLAG)}")
    g("v_lshlrev_b32 v19, 2, v1")
    n = 0
    for blk in range(4):
        for t in range(4):
            for st in range(2):
                if n == TK and True:
                    pass
                g.throttle(TK)
                so = blk*32768 + (t & 1)*16384
                imm = (t >> 1)*512 + st*128
                reg = KR + 32*blk + 8*t + 4*st
                g(f"s_mov_b32 s{T+3}, {so}")
                g(f"buffer_load_dwordx4 v[{reg}:{reg+3}], v18, s[{SRD_A}:{SRD_A+3}], s{T+3} offen offset:{imm} nt"); g.vm("K")
                n += 1
                if n == min(TK, 4):
                    g("s_barrier")
                if n == cfg["QFLAG_AT"]:
                    g(f"buffer_load_dword v20, v19, s[{SRD_WS}:{SRD_WS+3}], s{T+4} offen sc1"); g.vm("qflag")
    g(f"s_lshl_b32 s{T}, s{KW}, 2\ns_add_u32 s{T}, s{T}, {L_GATE}")
    g(f"v_mov_b32 v21, s{T}\nv_mov_b32 v22, 1")
    g("ds_write_b32 v21, v22")
    stamp(g, 1)
    g.wait("qflag")
    make_tags(g)
    Lq = g.nl("L_qf"); Lqd = g.nl("L_qfd")
    g(f"s_mov_b32 s{S_SPIN}, 0")
    g.label(Lq)
    g(f"v_cmp_ne_u32 vcc, s{S_NONCE}, v20")
    g(f"s_cbranch_vccz {Lqd}")
    g(f"s_add_u32 s{S_SPIN}, s{S_SPIN}, 1")
    g(f"s_cmp_gt_u32 s{S_SPIN}, {cfg['spin_glb']}")
    g(f"s_cbranch_scc1 {Lqd}")
    g(f"buffer_load_dword v20, v19, s[{SRD_WS}:{SRD_WS+3}], s{T+4} offen sc1")
    g("s_waitcnt vmcnt(0)")
    g(f"s_branch {Lq}")
    g.label(Lqd)
    g(f"s_lshl_b32 s{T}, s{S_PAIR}, 14\ns_lshl_b32 s{T+1}, s{KW}, 10\ns_add_u32 s{T}, s{T}, s{T+1}\ns_add_u32 s{T}, s{T}, {hex(WS_QBOX)}")
    g("v_lshlrev_b32 v19, 4, v1")
    g(f"v_add_u32 v19, s{T}, v19")
    QG = 64
    for ks in range(4):
        g(f"s_mov_b32 s{T+3}, {ks*4096}")
        g(f"buffer_load_dwordx4 v[{QG+4*ks}:{QG+4*ks+3}], v19, s[{SRD_WS}:{SRD_WS+3}], s{T+3} offen sc1")
    g("s_waitcnt vmcnt(0)")
    g.vm_reset()
    stamp(g, 2)
    for r in range(4):
        g(f"v_add_f32 v{QG+r}, v{QG+r}, v{QG+4+r}")
        g(f"v_add_f32 v{QG+8+r}, v{QG+8+r}, v{QG+12+r}")
        g(f"v_add_f32 v{QG+r}, v{QG+r}, v{QG+8+r}")
    g(f"v_cvt_pk_bf16_f32 v{QG}, v{QG}, v{QG+1}\nv_cvt_pk_bf16_f32 v{QG+1}, v{QG+2}, v{QG+3}")
    g(f"s_lshl_b32 s{T}, s{KW}, 9\ns_add_u32 s{T}, s{T}, {L_Q}")
    g(f"v_lshlrev_b32 v19, 3, v1\nv_add_u32 v19, s{T}, v19")
    g(f"ds_write_b64 v19, v[{QG}:{QG+1}]")
    g("s_waitcnt lgkmcnt(0)")
    g("s_mov_b64 exec, 1")
    g(f"v_mov_b32 v21, {L_QRDY}\nv_mov_b32 v22, 1")
    g("ds_add_u32 v21, v22")
    g("s_mov_b64 exec, -1")
    g(f"v_mov_b32 v21, {L_QRDY}")
    lds_spin(g, "v21", 4, "qrdy")
    g("v_and_b32 v19, 7, v16\nv_lshlrev_b32 v19, 8, v19")
    g("v_lshrrev_b32 v20, 3, v16\nv_lshlrev_b32 v20, 6, v20\nv_add_u32 v19, v19, v20")
    g("v_lshlrev_b32 v20, 4, v17\nv_add_u32 v19, v19, v20")
    QB = 8
    g(f"ds_read_b128 v[{QB}:{QB+3}], v19 offset:{L_Q}")
    g(f"ds_read_b128 v[{QB+4}:{QB+7}], v19 offset:{L_Q+128}")
    g("s_waitcnt lgkmcnt(0)")
    stamp(g, 3)
    S = 32
    DT = (64, 96)
    for blk in range(4):
        d = DT[blk & 1]
        for t in range(4):
            for st in range(2):
                reg = KR + 32*blk + 8*t + 4*st
                c = "0" if st == 0 else f"v[{d+4*t}:{d+4*t+3}]"
                g(f"v_mfma_f32_16x16x32_bf16 v[{d+4*t}:{d+4*t+3}], v[{reg}:{reg+3}], v[{QB+4*st}:{QB+4*st+3}], {c}")
        if blk >= 1:
            qk_reduce(g, DT[(blk-1) & 1], S + 8*(blk-1))
    qk_reduce(g, DT[1], S + 24)
    stamp(g, 4)
    SC = hex(f2u(128 ** -0.5))
    for i in range(0, 32, 2):
        a, b = S+i, S+i+1
        g(f"v_cvt_pk_bf16_f32 v64, v{a}, v{b}")
        g(f"v_lshlrev_b32 v{a}, 16, v64\nv_and_b32 v{b}, 0xffff0000, v64")
        g(f"v_mul_f32 v{a}, {SC}, v{a}\nv_mul_f32 v{b}, {SC}, v{b}")
        g(f"v_cvt_pk_bf16_f32 v65, v{a}, v{b}")
        g(f"v_lshlrev_b32 v{a}, 16, v65\nv_and_b32 v{b}, 0xffff0000, v65")
    g(f"v_max3_f32 v64, v{S}, v{S+1}, v{S+2}")
    for i in range(3, 31, 2):
        g(f"v_max3_f32 v64, v64, v{S+i}, v{S+i+1}")
    g(f"v_max_f32 v64, v64, v{S+31}")
    allreduce_hi(g, 64, 65, "v_max_f32")
    L2E = hex(f2u(LOG2E))
    g(f"s_mov_b32 s{T+8}, {L2E}")
    g(f"v_mul_f32 v65, s{T+8}, v64")
    for i in range(32):
        g(f"v_fma_f32 v{S+i}, v{S+i}, s{T+8}, -v65")
    for i in range(32):
        g(f"v_exp_f32 v{S+i}, v{S+i}")
    g(f"v_add_f32 v66, v{S}, v{S+1}")
    for i in range(2, 32, 2):
        g(f"v_add_f32 v67, v{S+i}, v{S+i+1}\nv_add_f32 v66, v66, v67")
    allreduce_hi(g, 66, 67, "v_add_f32")
    g(f"s_lshl_b32 s{T}, s{KW}, 6\ns_add_u32 s{T}, s{T}, {L_STAT}")
    g(f"v_lshlrev_b32 v19, 3, v1\nv_add_u32 v19, s{T}, v19")
    g("v_mov_b32 v68, v64\nv_mov_b32 v69, v66")
    g("s_mov_b64 exec, 0xff")
    g("ds_write_b64 v19, v[68:69]")
    g("s_waitcnt lgkmcnt(0)")
    g("s_mov_b64 exec, 1")
    g(f"v_mov_b32 v21, {L_SCNT}\nv_mov_b32 v22, 1")
    g("ds_add_u32 v21, v22")
    g("s_mov_b64 exec, -1")
    g(f"v_mov_b32 v21, {L_SCNT}")
    lds_spin(g, "v21", 4, "scnt")
    stamp(g, 5)
    g(f"v_and_b32 v19, 7, v1\nv_lshlrev_b32 v19, 3, v19")
    for k in range(4):
        g(f"ds_read_b64 v[{68+2*k}:{69+2*k}], v19 offset:{L_STAT + 64*k}")
    g("s_waitcnt lgkmcnt(0)")
    g("v_max3_f32 v76, v68, v70, v72\nv_max_f32 v76, v76, v74")
    for k in range(4):
        g(f"v_sub_f32 v{68+2*k}, v{68+2*k}, v76\nv_mul_f32 v{68+2*k}, s{T+8}, v{68+2*k}")
    for k in range(4): g(f"v_exp_f32 v{68+2*k}, v{68+2*k}")
    g("v_mul_f32 v77, v68, v69\nv_fmac_f32 v77, v70, v71\nv_fmac_f32 v77, v72, v73\nv_fmac_f32 v77, v74, v75")
    Lnp = g.nl("L_nostat")
    g(f"s_cmp_lg_u32 s{KW}, 0")
    g(f"s_cbranch_scc1 {Lnp}")
    g("v_mov_b32 v80, v76\nv_mov_b32 v81, v77")
    g("v_mov_b32_dpp v82, v76 quad_perm:[1,0,3,2] row_mask:0xf bank_mask:0xf")
    g("v_mov_b32_dpp v83, v77 quad_perm:[1,0,3,2] row_mask:0xf bank_mask:0xf")
    tags_apply(g, 80)
    g(f"s_lshl_b32 s{T}, s{S_PAIR}, 5\ns_add_u32 s{T}, s{T}, s{S_S}\ns_lshl_b32 s{T}, s{T}, 6\ns_add_u32 s{T}, s{T}, {hex(WS_STAT)}")
    g("v_lshlrev_b32 v19, 3, v1")
    g("s_mov_b64 exec, 0x55")
    g(f"buffer_store_dwordx4 v[80:83], v19, s[{SRD_WS}:{SRD_WS+3}], s{T} offen sc1")
    g("s_mov_b64 exec, -1")
    g.label(Lnp)
    g(f"s_lshl_b32 s{T}, s{S_PAIR}, 11\ns_add_u32 s{T}, s{T}, {hex(WS_STAT)}")
    g("v_lshrrev_b32 v19, 3, v1\nv_lshlrev_b32 v19, 6, v19")
    g("v_bfe_u32 v20, v1, 1, 2\nv_lshlrev_b32 v20, 4, v20\nv_add_u32 v19, v19, v20")
    g(f"v_add_u32 v19, s{T}, v19")
    def issue_st():
        for n in range(4):
            g(f"buffer_load_dwordx4 v[{80+4*n}:{83+4*n}], v19, s[{SRD_WS}:{SRD_WS+3}], 0 offen offset:{n*512} sc1")
    poll_gather(g, "stat", issue_st, 4, 80, 78, cfg["sleep_stat"])
    stamp(g, 6)
    g("v_and_b32 v20, 1, v1\nv_cmp_eq_u32 vcc, 1, v20")
    g(f"s_not_b32 s{T}, s{S_TAGM}")
    for n in range(4):
        g(f"v_cndmask_b32 v{80+4*n}, v{80+4*n}, v{82+4*n}, vcc")
        g(f"v_cndmask_b32 v{81+4*n}, v{81+4*n}, v{83+4*n}, vcc")
        g(f"v_and_b32 v{80+4*n}, s{T}, v{80+4*n}")
    g("v_max3_f32 v78, v80, v84, v88\nv_max_f32 v78, v78, v92")
    dpp_acc(g, 78, "v_max_f32", "row_ror:8")
    allreduce_hi(g, 78, 79, "v_max_f32")
    for n in range(4):
        g(f"v_sub_f32 v{80+4*n}, v{80+4*n}, v78\nv_mul_f32 v{80+4*n}, s{T+8}, v{80+4*n}")
    for n in range(4): g(f"v_exp_f32 v{80+4*n}, v{80+4*n}")
    g("v_mul_f32 v79, v80, v81\nv_fmac_f32 v79, v84, v85\nv_fmac_f32 v79, v88, v89\nv_fmac_f32 v79, v92, v93")
    dpp_acc(g, 79, "v_add_f32", "row_ror:8")
    allreduce_hi(g, 79, 80, "v_add_f32")
    g(f"v_sub_f32 v64, v64, v78\nv_mul_f32 v64, s{T+8}, v64\nv_exp_f32 v64, v64")
    g("v_rcp_f32 v65, v79")
    g("v_fma_f32 v66, -v79, v65, 1.0\nv_fma_f32 v65, v66, v65, v65")
    g("v_mul_f32 v64, v64, v65")
    for i in range(32): g(f"v_mul_f32 v{S+i}, v{S+i}, v64")
    g(f"s_lshl_b32 s{T}, s{KW}, 12\ns_add_u32 s{T}, s{T}, {L_P}")
    g(f"v_lshlrev_b32 v20, 4, v1\nv_add_u32 v20, s{T}, v20")
    for blk in range(4):
        for i4 in range(4):
            g(f"v_cvt_pk_bf16_f32 v{68+4*blk+i4}, v{S+8*blk+2*i4}, v{S+8*blk+2*i4+1}")
        g(f"ds_write_b128 v20, v[{68+4*blk}:{71+4*blk}] offset:{blk*1024}")
    g("s_waitcnt lgkmcnt(0)")
    g(f"s_lshl_b32 s{T}, s{KW}, 2\ns_add_u32 s{T}, s{T}, {L_PFLAG}")
    g(f"v_mov_b32 v21, s{T}\nv_mov_b32 v22, 1")
    g("ds_write_b32 v21, v22")
    stamp(g, 7)
    g(f"s_lshl_b32 s{T}, s{S_HKV}, 5\ns_lshl_b32 s{T+1}, s{KW}, 2\ns_add_u32 s{T}, s{T}, s{T+1}\ns_lshl_b32 s{T}, s{T}, 13")
    g(f"s_lshl_b32 s{T+1}, s{S_B}, 5\ns_add_u32 s{T+1}, s{T+1}, s{S_S}\ns_lshl_b32 s{T+1}, s{T+1}, 7\ns_add_u32 s{T}, s{T}, s{T+1}")
    g(f"s_add_u32 s{T}, s{T}, {hex(WS_H2)}")
    g("v_and_b32 v21, 1, v17\nv_lshlrev_b32 v21, 17, v21")
    g("v_lshrrev_b32 v22, 1, v17\nv_lshlrev_b32 v22, 14, v22\nv_add_u32 v21, v21, v22")
    g("v_lshrrev_b32 v22, 3, v16\nv_lshlrev_b32 v22, 13, v22\nv_add_u32 v21, v21, v22")
    g("v_and_b32 v22, 7, v16\nv_lshlrev_b32 v22, 4, v22\nv_add_u32 v21, v21, v22")
    g(f"v_add_u32 v21, s{T}, v21")
    g(f"s_lshl_b32 s{T}, s{KW}, 10\ns_add_u32 s{T}, s{T}, {L_P}")
    g(f"v_lshlrev_b32 v20, 4, v1\nv_add_u32 v20, s{T}, v20")
    g(f"s_lshr_b32 s{T}, s{S_WG}, 4\ns_lshl_b32 s{T}, s{T}, 3\ns_add_u32 s{S_RHO}, s{T}, s{S_PAIR}")
    g(f"s_lshr_b32 s{T}, s{S_WG}, 5\ns_lshl_b32 s{T}, s{T}, 3\ns_add_u32 s{S_KAP}, s{T}, s{S_PAIR}")
    g("v_lshlrev_b32 v23, 4, v1")
    g("s_barrier")
    stamp(g, 8)
    for k in range(4):
        g(f"ds_read_b128 v[{64+4*k}:{67+4*k}], v20 offset:{k*4096}")
    g("s_waitcnt lgkmcnt(0)")
    for r in range(4):
        g(f"v_add_f32 v{64+r}, v{64+r}, v{68+r}\nv_add_f32 v{72+r}, v{72+r}, v{76+r}")
    for r in range(4): g(f"v_add_f32 v{64+r}, v{64+r}, v{72+r}")
    tags_apply(g, 64)
    g(f"buffer_store_dwordx4 v[64:67], v21, s[{SRD_WS}:{SRD_WS+3}], 0 offen sc1")
    stamp(g, 9)
    g(f"s_lshl_b32 s{T}, s{S_RHO}, 13\ns_lshl_b32 s{T+1}, s{KW}, 11\ns_add_u32 s{T}, s{T}, s{T+1}\ns_add_u32 s{T}, s{T}, {hex(WS_H2)}")
    g(f"v_add_u32 v24, s{T}, v23")
    def issue2():
        for n in range(2):
            g(f"buffer_load_dwordx4 v[{80+4*n}:{83+4*n}], v24, s[{SRD_WS}:{SRD_WS+3}], 0 offen offset:{n*1024} sc1")
    g("v_and_b32 v25, 1, v17\nv_lshlrev_b32 v25, 1, v25\nv_lshrrev_b32 v26, 1, v17\nv_or_b32 v25, v25, v26")
    g("v_lshlrev_b32 v26, 5, v25\nv_and_b32 v27, 7, v1\nv_lshlrev_b32 v27, 2, v27\nv_add_u32 v26, v26, v27")
    g(f"s_lshr_b32 s{T}, s{KW}, 1\ns_lshl_b32 s{T}, s{T}, 7\nv_add_u32 v26, s{T}, v26")
    poll_gather(g, "h2", issue2, 2, 80, 78, cfg["sleep_h2"])
    stamp(g, 10)
    for r in range(4): g(f"v_add_f32 v{80+r}, v{80+r}, v{84+r}")
    halve4(g, 80)
    dpp_acc(g, 80, "v_add_f32", "row_ror:8")
    g(f"s_mov_b32 s{T}, 0x00ff00ff\ns_mov_b32 s{T+1}, 0x00ff00ff\ns_mov_b64 exec, s[{T}:{T+1}]")
    g(f"ds_add_f32 v26, v80 offset:{L_ACC2}")
    g("s_mov_b64 exec, -1")
    g(f"s_lshl_b32 s{T}, s{S_KAP}, 14\ns_lshl_b32 s{T+1}, s{KW}, 12\ns_add_u32 s{T}, s{T}, s{T+1}\ns_add_u32 s{T}, s{T}, {hex(WS_H3)}")
    g(f"v_add_u32 v24, s{T}, v23")
    g("v_and_b32 v27, 7, v1\nv_lshlrev_b32 v27, 4, v27\nv_lshlrev_b32 v26, 2, v25\nv_add_u32 v26, v26, v27")
    g("s_waitcnt lgkmcnt(0)")
    g("s_barrier")
    stamp(g, 11)
    def issue4():
        for n in range(4):
            g(f"buffer_load_dwordx4 v[{80+4*n}:{83+4*n}], v24, s[{SRD_WS}:{SRD_WS+3}], 0 offen offset:{n*1024} sc1")
    poll_gather(g, "h3", issue4, 4, 80, 78, cfg["sleep_h3"])
    stamp(g, 12)
    for r in range(4):
        g(f"v_add_f32 v{80+r}, v{80+r}, v{84+r}\nv_add_f32 v{88+r}, v{88+r}, v{92+r}")
    for r in range(4): g(f"v_add_f32 v{80+r}, v{80+r}, v{88+r}")
    halve4(g, 80)
    dpp_acc(g, 80, "v_add_f32", "row_ror:8")
    g(f"s_mov_b32 s{T}, 0x00ff00ff\ns_mov_b32 s{T+1}, 0x00ff00ff\ns_mov_b64 exec, s[{T}:{T+1}]")
    g(f"ds_add_f32 v26, v80 offset:{L_ACC3}")
    g("s_mov_b64 exec, -1")
    g(f"s_lshl_b32 s{T}, s{S_WG}, 14\ns_lshl_b32 s{T+1}, s{KW}, 12\ns_add_u32 s{T}, s{T}, s{T+1}\ns_add_u32 s{T}, s{T}, {hex(WS_H4)}")
    g(f"v_add_u32 v24, s{T}, v23")
    g("v_lshlrev_b32 v27, 4, v16\nv_lshlrev_b32 v26, 2, v25\nv_add_u32 v26, v26, v27")
    g("s_waitcnt lgkmcnt(0)")
    g("s_barrier")
    stamp(g, 13)
    g(f"s_cmp_ge_u32 s{S_WG}, 224")
    g("s_cbranch_scc1 L_fin")
    g(f"s_mov_b32 s{T+10}, 0x1fff1fff\ns_mov_b32 s{T+11}, 0x1fff1fff")
    for r in range(80, 96): g(f"v_mov_b32 v{r}, 0")
    poll_gather(g, "h4", issue4, 4, 80, 78, cfg["sleep_h4"], exec_mask=f"s[{T+10}:{T+11}]")
    stamp(g, 14)
    for r in range(4):
        g(f"v_add_f32 v{80+r}, v{80+r}, v{84+r}\nv_add_f32 v{88+r}, v{88+r}, v{92+r}")
    for r in range(4): g(f"v_add_f32 v{80+r}, v{80+r}, v{88+r}")
    halve4(g, 80)
    g(f"s_mov_b64 exec, s[{T+10}:{T+11}]")
    g(f"ds_add_f32 v26, v80 offset:{L_ACC4}")
    g("s_mov_b64 exec, -1")
    g("s_waitcnt lgkmcnt(0)")
    g("s_barrier")
    g("s_branch L_final")

def qk_reduce(g, d, s):
    for tp in range(2):
        for r in range(4):
            g(f"v_permlane32_swap_b32 v{d+4*tp+r}, v{d+4*(tp+2)+r}")
    for tp in range(2):
        for r in range(4):
            g(f"v_add_f32_dpp v{s+4*tp+r}, v{d+4*(tp+2)+r}, v{d+4*tp+r} row_ror:8 row_mask:0xf bank_mask:0xf")

def final_path(g):
    cfg = g.cfg
    T = S_T0
    g.label("L_final")
    g(f"s_cmp_ge_u32 s{S_WG}, 128")
    g("s_cbranch_scc1 L_fin")
    g("v_and_b32 v16, 15, v1\nv_lshrrev_b32 v17, 4, v1")
    g(f"s_cmp_eq_u32 s{S_W}, 7")
    g("s_cbranch_scc1 L_final_h")
    g(f"s_lshl_b32 s{T}, s{S_WG}, 14\ns_lshl_b32 s{T+1}, s{S_W}, 11\ns_add_u32 s{T}, s{T}, s{T+1}\ns_add_u32 s{T}, s{T}, {hex(WS_H5)}")
    g(f"v_lshlrev_b32 v24, 4, v1\nv_add_u32 v24, s{T}, v24")
    g("v_and_b32 v25, 1, v17\nv_lshlrev_b32 v25, 1, v25\nv_lshrrev_b32 v26, 1, v17\nv_or_b32 v25, v25, v26")
    g("v_and_b32 v27, 3, v1\nv_lshlrev_b32 v27, 4, v27\nv_lshlrev_b32 v26, 2, v25\nv_add_u32 v26, v26, v27")
    def issue2():
        for n in range(2):
            g(f"buffer_load_dwordx4 v[{80+4*n}:{83+4*n}], v24, s[{SRD_WS}:{SRD_WS+3}], 0 offen offset:{n*1024} sc1")
    poll_gather(g, "h5", issue2, 2, 80, 78, cfg["sleep_h5"])
    stamp(g, 15)
    for r in range(4): g(f"v_add_f32 v{80+r}, v{80+r}, v{84+r}")
    halve4(g, 80)
    dpp_acc(g, 80, "v_add_f32", "row_ror:8")
    dpp_acc(g, 80, "v_add_f32", "row_ror:4")
    g(f"s_mov_b32 s{T}, 0x000f000f\ns_mov_b32 s{T+1}, 0x000f000f\ns_mov_b64 exec, s[{T}:{T+1}]")
    g(f"ds_add_f32 v26, v80 offset:{L_ACC5}")
    g("s_mov_b64 exec, -1")
    g("s_waitcnt lgkmcnt(0)")
    g("s_barrier")
    g("s_branch L_fin")
    g.label("L_final_h")
    g("v_lshrrev_b32 v24, 1, v1\nv_lshlrev_b32 v24, 12, v24\nv_and_b32 v25, 1, v1\nv_lshlrev_b32 v25, 4, v25\nv_add_u32 v24, v24, v25")
    g(f"s_lshl_b32 s{T}, s{S_WG}, 5\ns_add_u32 s{T}, s{T}, {hex(WS_HBOX)}\nv_add_u32 v24, s{T}, v24")
    def issueh():
        g(f"buffer_load_dwordx4 v[80:83], v24, s[{SRD_WS}:{SRD_WS+3}], 0 offen sc1")
    poll_gather(g, "hb", issueh, 1, 80, 78, 0, exec_mask="0xf")
    srd(g, SRD_A, S_OUT, 4096)
    g(f"s_not_b32 s{T}, s{S_TAGM}")
    for r in range(4): g(f"v_and_b32 v{80+r}, s{T}, v{80+r}")
    g("v_lshlrev_b32 v25, 4, v1")
    g("v_lshrrev_b32 v26, 1, v1\nv_lshlrev_b32 v26, 11, v26\nv_and_b32 v27, 1, v1\nv_lshlrev_b32 v27, 3, v27\nv_add_u32 v26, v26, v27")
    g(f"s_lshl_b32 s{T}, s{S_WG}, 4\nv_add_u32 v26, s{T}, v26")
    g("s_barrier")
    g("s_mov_b64 exec, 0xf")
    g(f"ds_read_b128 v[84:87], v25 offset:{L_ACC5}")
    g("s_waitcnt lgkmcnt(0)")
    g("v_cvt_pk_bf16_f32 v88, v84, v85\nv_cvt_pk_bf16_f32 v89, v86, v87")
    g("v_lshlrev_b32 v84, 16, v88\nv_and_b32 v85, 0xffff0000, v88\nv_lshlrev_b32 v86, 16, v89\nv_and_b32 v87, 0xffff0000, v89")
    for r in range(4): g(f"v_add_f32 v{84+r}, v{84+r}, v{80+r}")
    g("v_cvt_pk_bf16_f32 v88, v84, v85\nv_cvt_pk_bf16_f32 v89, v86, v87")
    g(f"buffer_store_dwordx2 v[88:89], v26, s[{SRD_A}:{SRD_A+3}], 0 offen")
    g(f"s_cmp_lg_u32 s{S_WG}, 0")
    g("s_cbranch_scc1 L_final_noe")
    g("s_mov_b64 exec, 1")
    g(f"v_mov_b32 v24, s{S_NONCE}\nv_mov_b32 v25, 0")
    g(f"buffer_store_dword v24, v25, s[{SRD_WS}:{SRD_WS+3}], 0 offen sc1")
    g.label("L_final_noe")
    g("s_mov_b64 exec, -1")
    stamp(g, 15)
    g.label("L_fin")
    dump_stamps(g)
    g.label("L_end")
    g("s_endpgm")
    g.label("L_code_end")

HEADER = """; Fused preLN GQA decode attention + SiLU FFN layer for MI355X (gfx950).
"""

def build(cfg):
    g = G(cfg)
    a = g.a
    for l in HEADER.strip().split("\n"): a(l)
    a(f"; @launch grid=(256,1,1) block=(512,1,1) lds={LDS_SIZE}")
    a('.amdgcn_target "amdgcn-amd-amdhsa--gfx950"')
    a(".text")
    a(f".globl {NAME}")
    a(".p2align 8")
    a(f".type {NAME},@function")
    a(f"{NAME}:")
    prologue(g)
    saved = list(g.out)
    vw_path(g)
    kw_path(g)
    final_path(g)
    a(f""".section .rodata,"a"
.p2align 6
.amdhsa_kernel {NAME}
  .amdhsa_next_free_vgpr 256
  .amdhsa_next_free_sgpr 102
  .amdhsa_accum_offset 256
  .amdhsa_group_segment_fixed_size 0
  .amdhsa_kernarg_size 88
  .amdhsa_user_sgpr_count 2
  .amdhsa_user_sgpr_kernarg_segment_ptr 1
  .amdhsa_system_sgpr_workgroup_id_x 1
  .amdhsa_float_denorm_mode_32 3
.end_amdhsa_kernel""")
    return hazard.fix(a.text(), verbose=True)

DEFAULT = dict(TK=7, TV=7, QFLAG_AT=22, spin_lds=200000, spin_glb=100000, poll_sleep=0,
               sleep_stat=0, sleep_h2=0, sleep_h3=12, sleep_h4=12, sleep_h5=12, prefetch=1)

if __name__ == "__main__":
    cfg = dict(DEFAULT)
    out = sys.argv[1]
    for kv in sys.argv[2:]:
        k, v = kv.split("=")
        cfg[k] = int(v)
    open(out, "w").write(build(cfg))
```

```python
import sys
from asmgen import Asm
import hazard

NAME = "sequential_preLN__gqa_block_cached__dense_activation_silu__decode_kernel"

WS_E      = 0x000000
WS_QFLAG  = 0x001000
WS_STAT   = 0x004000
WS_HBOX   = 0x00C000
WS_QBOX   = 0x010000
PS2 = 4096 + 256
PS3 = 2048 + 256
PS4 = 6144 + 256
PS5 = 4096 + 256
WS_H2     = 0x050000
WS_H3     = 0x170000
WS_H4     = 0x210000
WS_H5     = 0x380000
WS_END    = 0x480000
WS_DBG    = 0x800000
WS_SIZE   = 0x1000000

L_PART5 = 0x000
L_GATE  = 0x500
L_PFLAG = 0x510
L_QCNT  = 0x520
L_QRDY  = 0x524
L_SCNT  = 0x528
L_STAT  = 0x5400
L_VISS  = 0x530
L_SISS  = 0x540
L_EARLY = 0x550
L_ZEND  = 0x800
L_Q     = 0x800
L_P     = 0x1000
L_FAC2  = 0x5000
L_RED   = 0x5800
L_ACT2  = 0x6000
L_ACT3  = 0x6200
L_ACT4  = 0x6300
L_PIV   = 0x6400
L_HQ    = 0x6480
LDS_SIZE = 0x6800

TAGMASK = 0x3FF
LOG2E = 1.4426950408889634
import struct
def f2u(x): return struct.unpack("<I", struct.pack("<f", x))[0]

class G:
    def __init__(self, cfg):
        self.a = Asm(); self.cfg = cfg; self.out = []; self.role = 'c'
    def __call__(self, s): self.a(s)
    def label(self, s): self.a.label(s)
    def nl(self, p): return self.a.newlabel(p)
    def vm_reset(self): self.out = []
    def vm(self, tag): self.out.append(tag)
    def wait(self, tag):
        if tag not in self.out: return
        idx = max(i for i, t in enumerate(self.out) if t == tag)
        n = len(self.out) - 1 - idx
        assert n <= 63
        self(f"s_waitcnt vmcnt({n})")
        self.out = self.out[idx+1:]
    def throttle(self, T):
        if len(self.out) >= T:
            self(f"s_waitcnt vmcnt({T-1})")
            self.out = self.out[len(self.out)-(T-1):] if T > 1 else []
    def wait_all(self):
        self("s_waitcnt vmcnt(0)"); self.out = []

def vr(b, n=1): return f"v{b}" if n == 1 else f"v[{b}:{b+n-1}]"
def sr(b, n=1): return f"s{b}" if n == 1 else f"s[{b}:{b+n-1}]"

S_WG = 2; S_W = 3
S_X, S_K, S_V, S_WQ, S_WO, S_BX, S_W1, S_W2 = 16, 18, 20, 22, 24, 26, 28, 30
S_OUT, S_DBG, S_WS = 32, 34, 36
SRD_A, SRD_B, SRD_C, SRD_WS = 40, 44, 48, 52
SRD_D = 56
S_T0 = 60
S_NONCE = 80
S_P0, S_P1 = 81, 82
S_MASKB = 84
S_SPIN = 86
S_TAGM = 87
S_B, S_HKV, S_S, S_PAIR = 88, 89, 90, 91
S_EX = 92
S_ST = 94
S_KAP, S_RHO = 96, 97
S_E = 98
S_CG1, S_PHI = 100, 101
S_EARLY = 69
S_KB, S_KH = 38, 39

def srd(g, dst, base, nbytes, add=None):
    if add is None:
        g(f"s_mov_b32 s{dst}, s{base}")
        g(f"s_mov_b32 s{dst+1}, s{base+1}")
    else:
        g(f"s_add_u32 s{dst}, s{base}, s{add}")
        g(f"s_addc_u32 s{dst+1}, s{base+1}, 0")
    g(f"s_mov_b32 s{dst+2}, {hex(nbytes)}")
    g(f"s_mov_b32 s{dst+3}, 0x20000")

STAMP_REGS = [4, 6, 8, 10, 12, 14, 70, 72, 74, 76, 78]
STAMP_SETS = {"v": [0, 5, 7, 8, 9, 10, 11, 12, 13, 14, 15], "k": [0, 1, 4, 6, 8, 10, 12, 13, 14, 9, 15]}
ALT_SETS = {"v": [0, 10, 20, 11, 12, 21, 13, 14, 22, 23, 15], "k": [0, 9, 24, 10, 25, 12, 26, 14, 11, 13, 15]}
def stamp(g, idx):
    if not g.cfg.get("stamps"): return
    role = g.role
    STAMP_SETS = ALT_SETS if g.cfg.get("alt") else globals()["STAMP_SETS"]
    if role == "c":
        if idx == 0: r = STAMP_REGS[0]
        elif idx == 15: r = STAMP_REGS[10]
        else: return
    else:
        if idx not in STAMP_SETS[role]: return
        if g.cfg.get("stamps") == 2: return
        only = g.cfg.get("only")
        if only is not None and f"{role}{idx}" not in str(only).split("+"): return
        r = STAMP_REGS[STAMP_SETS[role].index(idx)]
    if g.cfg.get("spincount") and role == "k" and idx in (6, 10, 12, 14):
        g(f"s_add_u32 s{r}, s{S_SPIN}, 1000")
        return
    g(f"s_memrealtime s[{r}:{r+1}]")

def dump_stamps(g):
    if not g.cfg.get("stamps"): return
    g("s_waitcnt lgkmcnt(0)")
    for i, r in enumerate(STAMP_REGS):
        g(f"v_writelane_b32 v3, s{r}, {i}")
    g(f"s_lshl_b32 s{S_T0}, s{S_WG}, 3")
    g(f"s_add_u32 s{S_T0}, s{S_T0}, s{S_W}")
    g(f"s_lshl_b32 s{S_T0}, s{S_T0}, 6")
    g(f"s_add_u32 s{S_T0}, s{S_T0}, {hex(WS_DBG)}")
    g(f"v_lshlrev_b32 v2, 2, v1")
    g(f"v_cmp_gt_u32 vcc, 16, v1")
    g(f"s_and_saveexec_b64 s[{S_EX}:{S_EX+1}], vcc")
    g(f"buffer_store_dword v3, v2, s[{SRD_WS}:{SRD_WS+3}], s{S_T0} offen")
    g(f"s_mov_b64 exec, s[{S_EX}:{S_EX+1}]")

def lds_spin(g, addr_v, want, name):
    L = g.nl("L_spin_" + name); D = g.nl("L_done_" + name)
    g(f"s_mov_b32 s{S_SPIN}, 0")
    g.label(L)
    g(f"ds_read_b32 v2, {addr_v}")
    g(f"s_add_u32 s{S_SPIN}, s{S_SPIN}, 1")
    g("s_waitcnt lgkmcnt(0)")
    g(f"v_readfirstlane_b32 s{S_T0}, v2")
    g(f"s_cmp_ge_u32 s{S_T0}, {want}")
    g(f"s_cbranch_scc1 {D}")
    g(f"s_cmp_gt_u32 s{S_SPIN}, {g.cfg['spin_lds']}")
    g(f"s_cbranch_scc1 {D}")
    g("s_sleep 1")
    g(f"s_branch {L}")
    g.label(D)

def tags_apply(g, base, n4=1):
    for q in range(n4):
        for r in range(4):
            g(f"v_bfi_b32 v{base+4*q+r}, s{S_TAGM}, v{4+r}, v{base+4*q+r}")

def tags_check(g, base, nq, acc):
    first = True
    for q in range(nq):
        for r in range(4):
            x = base + 4*q + r
            if first:
                g(f"v_xor_b32 v{acc}, v{x}, v{4+r}"); first = False
            else:
                g(f"v_bitop3_b32 v{acc}, v{acc}, v{x}, v{4+r} bitop3:0xf6")
    g(f"v_and_b32 v{acc}, s{S_TAGM}, v{acc}")
    g(f"v_cmp_ne_u32 vcc, 0, v{acc}")

def poll_gather(g, name, issue, nq, base, acc, first_sleep, exec_mask=None, hook=None, check=None, post=None):
    L = g.nl("L_poll_" + name); D = g.nl("L_pdone_" + name)
    if check is None:
        check = lambda: tags_check(g, base, nq, acc)
    g(f"s_mov_b32 s{S_SPIN}, 0")
    if first_sleep:
        fs = first_sleep
        while fs > 0:
            g(f"s_sleep {min(fs,127)}"); fs -= min(fs, 127)
    if exec_mask is not None:
        g(f"s_mov_b64 exec, {exec_mask}")
    if hook is not None or post is not None:
        issue()
        if hook is not None: hook()
        g("s_waitcnt vmcnt(0)")
        check()
        if post is not None: post()
        g(f"s_cbranch_vccz {D}")
    g.label(L)
    issue()
    g(f"s_add_u32 s{S_SPIN}, s{S_SPIN}, 1")
    g("s_waitcnt vmcnt(0)")
    check()
    g(f"s_cbranch_vccz {D}")
    g(f"s_cmp_gt_u32 s{S_SPIN}, {g.cfg['spin_glb']}")
    g(f"s_cbranch_scc1 {D}")
    if g.cfg.get("poll_sleep", 0):
        g(f"s_sleep {g.cfg['poll_sleep']}")
    g(f"s_branch {L}")
    g.label(D)
    if exec_mask is not None:
        g("s_mov_b64 exec, -1")
    g.vm_reset()

def halve4(g, v, op="add"):
    o = "v_add_f32" if op == "add" else "v_max_f32"
    g(f"v_permlane32_swap_b32 v{v}, v{v+1}")
    g(f"v_permlane32_swap_b32 v{v+2}, v{v+3}")
    g(f"{o} v{v}, v{v}, v{v+1}")
    g(f"{o} v{v+2}, v{v+2}, v{v+3}")
    g(f"v_permlane16_swap_b32 v{v}, v{v+2}")
    g(f"{o} v{v}, v{v}, v{v+2}")

def allreduce_hi(g, x, t, op):
    g(f"v_mov_b32 v{t}, v{x}")
    g(f"v_permlane16_swap_b32 v{x}, v{t}")
    g(f"{op} v{x}, v{x}, v{t}")
    g(f"v_mov_b32 v{t}, v{x}")
    g(f"v_permlane32_swap_b32 v{x}, v{t}")
    g(f"{op} v{x}, v{x}, v{t}")

def dpp_acc(g, x, op, ctrl):
    g(f"{op}_dpp v{x}, v{x}, v{x} {ctrl} row_mask:0xf bank_mask:0xf")

def bf16r(g, dst, src, tmp=None):
    g(f"v_cvt_pk_bf16_f32 v{dst}, v{src}, v{src}")
    g(f"v_lshlrev_b32 v{dst}, 16, v{dst}")

def build_sel(g, base, lane_v, t0, t1):
    g(f"v_and_b32 v{t0}, 7, v{lane_v}")
    g(f"v_and_b32 v{t1}, 1, v{lane_v}")
    g(f"v_cmp_eq_u32 s[{S_T0}:{S_T0+1}], 1, v{t1}")
    g(f"v_lshrrev_b32 v{t0}, 1, v{t0}")
    for par in range(2):
        lo = 0x0c0c0000 | ((2*par+1) << 8) | (2*par)
        hi = ((2*par+1) << 24) | ((2*par) << 16) | 0x0c0c
        g(f"v_mov_b32 v{t1}, {hex(lo)}")
        g(f"v_mov_b32 v{base+8}, {hex(hi)}")
        g(f"v_cndmask_b32 v{t1}, v{t1}, v{base+8}, s[{S_T0}:{S_T0+1}]")
        for w4 in range(4):
            g(f"v_cmp_eq_u32 vcc, {w4}, v{t0}")
            g(f"v_mov_b32 v{base+8}, 0x0c0c0c0c")
            g(f"v_cndmask_b32 v{base+2*w4+par}, v{base+8}, v{t1}, vcc")

def build_mask(g, base, lane_v, t0, t1):
    g(f"v_and_b32 v{t0}, 1, v{lane_v}")
    g(f"v_cmp_eq_u32 vcc, 1, v{t0}")
    g(f"v_mov_b32 v{t0}, 0xffff\nv_mov_b32 v{t1}, 0xffff0000")
    g(f"v_cndmask_b32 v{t1}, v{t0}, v{t1}, vcc")
    g(f"v_bfe_u32 v{t0}, v{lane_v}, 1, 2")
    for w4 in range(4):
        g(f"v_cmp_eq_u32 vcc, {w4}, v{t0}")
        g(f"v_cndmask_b32 v{base+w4}, 0, v{t1}, vcc")

def diag_mfma(g, dup, maskb, wreg, acc0, acc1, abuf):
    def ands(m):
        A = abuf + 4*(m & 1)
        for w4 in range(4):
            g(f"v_and_b32 v{A+w4}, v{dup+m}, v{maskb+w4}")
    ands(0)
    for m in range(8):
        A = abuf + 4*(m & 1)
        if m < 7:
            ands(m+1)
        acc = acc0 if m % 2 == 0 else acc1
        c = "0" if m < 2 else f"v[{acc}:{acc+3}]"
        g(f"v_mfma_f32_16x16x32_bf16 v[{acc}:{acc+3}], v[{A}:{A+3}], v[{wreg+4*m}:{wreg+4*m+3}], {c}")

def sel_perm(g, dst, pk, selbase, par):
    for w4 in range(4):
        g(f"v_perm_b32 v{dst+w4}, v{pk}, v{pk}, v{selbase+2*w4+par}")

def make_tags(g):
    g("v_readfirstlane_b32 s%d, v2" % S_E)
    N = S_NONCE
    g(f"s_add_u32 s{N}, s{S_E}, 1")
    t = S_T0
    g(f"s_and_b32 s{t}, s{N}, {TAGMASK}")
    g(f"v_mov_b32 v4, s{t}")
    g(f"s_mul_i32 s{t}, s{N}, 3\ns_lshr_b32 s{t+1}, s{N}, 10\ns_add_u32 s{t}, s{t}, s{t+1}\ns_and_b32 s{t}, s{t}, {TAGMASK}")
    g(f"v_mov_b32 v5, s{t}")
    g(f"s_mul_i32 s{t}, s{N}, 5\ns_lshr_b32 s{t+1}, s{N}, 20\ns_add_u32 s{t}, s{t}, s{t+1}\ns_and_b32 s{t}, s{t}, {TAGMASK}")
    g(f"v_mov_b32 v6, s{t}")
    g(f"s_mul_i32 s{t}, s{N}, 7\ns_lshr_b32 s{t+1}, s{N}, 15\ns_mul_i32 s{t+1}, s{t+1}, 3\ns_add_u32 s{t}, s{t}, s{t+1}\ns_and_b32 s{t}, s{t}, {TAGMASK}")
    g(f"v_mov_b32 v7, s{t}")
    g(f"s_mov_b32 s{S_TAGM}, {TAGMASK}")
```

```python
import sys
from kgen import *

def prologue(g):
    cfg = g.cfg
    g(f"s_cmp_ge_u32 s{S_WG}, 256")
    g("s_cbranch_scc1 L_end")
    g(f"s_load_dwordx16 s[{S_X}:{S_X+15}], s[0:1], 0")
    g(f"s_load_dwordx4 s[{S_OUT}:{S_OUT+3}], s[0:1], 64")
    g(f"s_load_dwordx2 s[{S_WS}:{S_WS+1}], s[0:1], 80")
    g("s_getpc_b64 s[4:5]")
    g.label("L_pc")
    g("v_lshrrev_b32 v8, 6, v0")
    g("v_and_b32 v1, 63, v0")
    g(f"s_mov_b32 s{SRD_D}, s4")
    g(f"s_mov_b32 s{SRD_D+1}, s5")
    g(f"s_mov_b32 s{SRD_D+2}, L_code_end-L_pc")
    g(f"s_mov_b32 s{SRD_D+3}, 0x20000")
    g(f"v_readfirstlane_b32 s{S_W}, v8")
    g("v_lshlrev_b32 v9, 6, v0")
    if cfg.get("prefetch", 1):
        g(f"buffer_load_dword v255, v9, s[{SRD_D}:{SRD_D+3}], 0 offen"); g.vm("pf")
    g("v_lshlrev_b32 v9, 2, v0")
    g("v_mov_b32 v8, 0")
    g("ds_write_b32 v9, v8")
    g(f"s_mov_b32 s{S_MASKB}, 0xff00ff00")
    g(f"s_mov_b32 s{S_MASKB+1}, 0xff00ff00")
    g("v_mov_b32 v3, 0")
    g("s_waitcnt lgkmcnt(0)")
    srd(g, SRD_WS, S_WS, WS_SIZE if cfg.get("stamps") or cfg.get("dump") else WS_END)
    g("v_mov_b32 v9, 0")
    g(f"buffer_load_dword v2, v9, s[{SRD_WS}:{SRD_WS+3}], 0 offen sc1"); g.vm("E")
    if cfg.get("stamps"):
        for r in STAMP_REGS[1:]: g(f"s_mov_b64 s[{r}:{r+1}], 0")
    stamp(g, 0)
    g(f"s_and_b32 s{S_PAIR}, s{S_WG}, 7")
    g(f"s_lshr_b32 s{S_S}, s{S_WG}, 3")
    g(f"s_lshr_b32 s{S_B}, s{S_PAIR}, 2")
    g(f"s_and_b32 s{S_HKV}, s{S_PAIR}, 3")
    g(f"s_cmp_ge_u32 s{S_W}, 4")
    g("s_cbranch_scc1 L_kw")

def vw_path(g):
    cfg = g.cfg
    T = S_T0
    SEL = 8
    srd(g, SRD_A, S_X, 4096)
    srd(g, SRD_B, S_WQ, 0x800000)
    XS = 128
    XA = 144
    WQ = 32
    g("v_and_b32 v16, 15, v1")
    g("v_lshrrev_b32 v17, 4, v1")
    g("v_lshlrev_b32 v18, 6, v1")
    for i in range(4):
        g(f"buffer_load_dwordx4 v[{XS+4*i}:{XS+4*i+3}], v18, s[{SRD_A}:{SRD_A+3}], 0 offen offset:{16*i}"); g.vm("xs")
    g(f"s_and_b32 s{T}, s{S_WG}, 3")
    g(f"s_lshl_b32 s{T}, s{T}, 8")
    g(f"s_lshl_b32 s{T+1}, s{S_W}, 6")
    g(f"s_add_u32 s{T}, s{T}, s{T+1}")
    g("v_lshrrev_b32 v19, 3, v16")
    g("v_lshlrev_b32 v20, 11, v19")
    g("v_lshlrev_b32 v21, 5, v17")
    g("v_add_u32 v20, v20, v21")
    g(f"s_lshl_b32 s{T+1}, s{T}, 1")
    g(f"v_add_u32 v20, s{T+1}, v20")
    for i in range(2):
        g(f"buffer_load_dwordx4 v[{XA+4*i}:{XA+4*i+3}], v20, s[{SRD_A}:{SRD_A+3}], 0 offen offset:{16*i}"); g.vm("xa")
    g(f"s_lshr_b32 s{T+2}, s{S_WG}, 3")
    g(f"s_mul_i32 s{T+4}, s{T+2}, 37\ns_lshr_b32 s{T+4}, s{T+4}, 8")
    g(f"s_mul_i32 s{T+5}, s{T+4}, 7\ns_sub_u32 s{S_CG1}, s{T+2}, s{T+5}")
    g(f"s_lshl_b32 s{T+4}, s{T+4}, 3")
    g(f"s_add_u32 s{S_KAP}, s{T+4}, s{S_PAIR}")
    g("v_lshlrev_b32 v21, 4, v17")
    g("v_add_u32 v21, v21, v19")
    g(f"v_add_u32 v21, s{T}, v21")
    g("v_lshlrev_b32 v21, 13, v21")
    g("v_and_b32 v22, 7, v16")
    g("v_lshlrev_b32 v22, 4, v22")
    g("v_add_u32 v21, v21, v22")
    g(f"s_lshr_b32 s{T+2}, s{S_WG}, 2")
    g(f"s_lshl_b32 s{T+2}, s{T+2}, 7")
    g(f"v_add_u32 v21, s{T+2}, v21")
    if cfg.get("x_wqcontig"):
        g(f"s_lshl_b32 s{T+2}, s{S_WG}, 15\ns_lshl_b32 s{T+3}, s{S_W}, 13\ns_add_u32 s{T+2}, s{T+2}, s{T+3}\nv_lshlrev_b32 v21, 4, v1\nv_add_u32 v21, s{T+2}, v21")
    for m in range(8):
        g(f"s_mov_b32 s{T+3}, {m*(1024 if cfg.get('x_wqcontig') else 16384)}")
        g(f"buffer_load_dwordx4 v[{WQ+4*m}:{WQ+4*m+3}], v21, s[{SRD_B}:{SRD_B+3}], s{T+3} offen nt"); g.vm("wq")
    g("s_barrier")
    build_sel(g, SEL, 1, 17, 18)
    g("v_and_b32 v16, 15, v1")
    g("v_lshrrev_b32 v17, 4, v1")
    g.wait("xs")
    g_wait_E = True
    make_tags_from(g, 2)
    F = 152
    for i in range(16):
        g(f"v_lshlrev_b32 v{F+2*i}, 16, v{XS+i}")
        g(f"v_and_b32 v{F+2*i+1}, 0xffff0000, v{XS+i}")
    g(f"v_add_f32 v22, v{F}, v{F+1}")
    for i in range(2, 32, 2):
        g(f"v_add_f32 v23, v{F+i}, v{F+i+1}")
        g("v_add_f32 v22, v22, v23")
    def red32(x):
        for c in ("row_ror:8", "row_ror:4", "row_ror:2", "row_ror:1"):
            dpp_acc(g, x, "v_add_f32", c)
        g(f"v_mov_b32 v23, v{x}")
        g(f"v_permlane16_swap_b32 v{x}, v23")
        g(f"v_add_f32 v{x}, v{x}, v23")
    red32(22)
    g("v_mul_f32 v22, 0x3a800000, v22")
    for i in range(32):
        g(f"v_sub_f32 v{F+i}, v{F+i}, v22")
    g(f"v_mul_f32 v24, v{F}, v{F}")
    for i in range(1, 32):
        g(f"v_fmac_f32 v24, v{F+i}, v{F+i}")
    red32(24)
    g("v_mul_f32 v24, 0x3a800000, v24")
    g(f"v_readlane_b32 s{S_P0}, v22, 0")
    g(f"v_readlane_b32 s{S_P1}, v22, 32")
    g(f"v_lshrrev_b32 v23, 5, v1\nv_lshlrev_b32 v23, 2, v23")
    g(f"ds_write_b32 v23, v22 offset:{L_PIV}")
    bf16r(g, 22, 22)
    bf16r(g, 24, 24)
    g(f"v_add_f32 v24, {hex(f2u(1e-5))}, v24")
    bf16r(g, 24, 24)
    sqrt_exact(g, 25, 24, 26, 27)
    bf16r(g, 25, 25)
    g(f"v_readlane_b32 s{T}, v22, 0")
    g(f"v_readlane_b32 s{T+1}, v22, 32")
    g(f"v_readlane_b32 s{T+2}, v25, 0")
    g(f"v_readlane_b32 s{T+3}, v25, 32")
    g(f"v_mov_b32 v22, s{T}\nv_mov_b32 v23, s{T+1}")
    g(f"v_cndmask_b32 v22, v22, v23, s[{S_MASKB}:{S_MASKB+1}]")
    g(f"v_mov_b32 v24, s{T+2}\nv_mov_b32 v23, s{T+3}")
    g(f"v_cndmask_b32 v24, v24, v23, s[{S_MASKB}:{S_MASKB+1}]")
    g("v_rcp_f32 v25, v24")
    g.wait("xa")
    for m in range(8):
        g(f"v_lshlrev_b32 v26, 16, v{XA+m}")
        g(f"v_and_b32 v27, 0xffff0000, v{XA+m}")
        g("v_sub_f32 v26, v26, v22")
        g("v_sub_f32 v27, v27, v22")
        g("v_cvt_pk_bf16_f32 v28, v26, v27")
        g("v_lshlrev_b32 v26, 16, v28")
        g("v_and_b32 v27, 0xffff0000, v28")
        for x in (26, 27):
            g(f"v_mul_f32 v28, v{x}, v25")
            g(f"v_fma_f32 v29, -v28, v24, v{x}")
            g(f"v_fma_f32 v{x}, v29, v25, v28")
        g(f"v_cvt_pk_bf16_f32 v{XA+m}, v26, v27")
    stamp(g, 1)
    D0, D1 = 64, 68
    for r in range(8): g(f"v_mov_b32 v{D0+r}, 0")
    g.wait("wq")
    stamp(g, 2)
    for m in range(8):
        A0 = 96 + 8*(m & 1); A1 = A0 + 4
        sel_perm(g, A0, XA+m, SEL, 0)
        sel_perm(g, A1, XA+m, SEL, 1)
        g(f"v_mfma_f32_16x16x32_bf16 v[{D0}:{D0+3}], v[{A0}:{A0+3}], v[{WQ+4*m}:{WQ+4*m+3}], v[{D0}:{D0+3}]")
        g(f"v_mfma_f32_16x16x32_bf16 v[{D1}:{D1+3}], v[{A1}:{A1+3}], v[{WQ+4*m}:{WQ+4*m+3}], v[{D1}:{D1+3}]")
    g("v_lshrrev_b32 v22, 1, v17")
    g("v_lshlrev_b32 v22, 8, v22")
    g("v_and_b32 v23, 1, v17")
    g("v_lshlrev_b32 v23, 4, v23")
    g("v_add_u32 v22, v22, v23")
    g("v_and_b32 v23, 7, v1")
    g("v_lshlrev_b32 v23, 5, v23")
    g("v_add_u32 v22, v22, v23")
    g(f"s_lshl_b32 s{T}, s{S_W}, 9\nv_add_u32 v22, s{T}, v22")
    for r in range(4):
        g(f"v_cndmask_b32 v{D0+r}, v{D0+r}, v{D1+r}, s[{S_MASKB}:{S_MASKB+1}]")
    for r in range(4):
        dpp_acc(g, D0+r, "v_add_f32", "row_ror:8")
    g(f"s_mov_b32 s{T}, 0x00ff00ff\ns_mov_b32 s{T+1}, 0x00ff00ff")
    g(f"s_mov_b64 exec, s[{T}:{T+1}]")
    g(f"ds_write_b128 v22, v[{D0}:{D0+3}] offset:{L_P}")
    g("s_mov_b64 exec, 1")
    g("s_waitcnt lgkmcnt(0)")
    g(f"v_mov_b32 v23, {L_QCNT}\nv_mov_b32 v24, 1")
    g("ds_add_rtn_u32 v25, v23, v24")
    g("s_waitcnt lgkmcnt(0)")
    g(f"v_readfirstlane_b32 s{T}, v25")
    g("s_mov_b64 exec, -1")
    g(f"s_cmp_lg_u32 s{T}, 3")
    g("s_cbranch_scc1 L_vw_qdone")
    g("v_lshlrev_b32 v22, 3, v1")
    for k in range(4):
        g(f"ds_read_b64 v[{96+2*k}:{97+2*k}], v22 offset:{L_P + 512*k}")
    g(f"s_lshr_b32 s{T}, s{S_WG}, 6")
    g(f"s_lshl_b32 s{T}, s{T}, 2")
    g(f"s_and_b32 s{T+1}, s{S_WG}, 3")
    g(f"s_add_u32 s{T}, s{T}, s{T+1}")
    g(f"s_lshl_b32 s{T}, s{T}, 13")
    g(f"s_lshr_b32 s{T+1}, s{S_WG}, 2")
    g(f"s_and_b32 s{T+1}, s{T+1}, 15")
    g(f"s_lshl_b32 s{T+1}, s{T+1}, 9")
    g(f"s_add_u32 s{T}, s{T}, s{T+1}")
    g(f"s_add_u32 s{T}, s{T}, {hex(WS_QBOX)}")
    g("v_lshrrev_b32 v23, 5, v1")
    g("v_lshlrev_b32 v23, 17, v23")
    g("v_and_b32 v24, 31, v1")
    g("v_lshlrev_b32 v24, 4, v24")
    g("v_add_u32 v23, v23, v24")
    g(f"v_mov_b32 v25, s{S_NONCE}")
    g(f"v_mov_b32 v27, s{S_NONCE}")
    g("s_waitcnt lgkmcnt(0)")
    g("v_add_f32 v96, v96, v98\nv_add_f32 v97, v97, v99\nv_add_f32 v100, v100, v102\nv_add_f32 v101, v101, v103")
    g("v_add_f32 v24, v96, v100\nv_add_f32 v26, v97, v101")
    g(f"buffer_store_dwordx4 v[24:27], v23, s[{SRD_WS}:{SRD_WS+3}], s{T} offen sc1")
    g.label("L_vw_qdone")
    MSK = 8
    build_mask(g, MSK, 1, 22, 23)
    stamp(g, 3)
    VR = 128
    g(f"s_lshl_b32 s{T}, s{S_PAIR}, 22")
    g(f"s_lshl_b32 s{T+1}, s{S_S}, 17")
    g(f"s_add_u32 s{T}, s{T}, s{T+1}")
    srd(g, SRD_A, S_V, 0x20000, add=T)
    srd(g, SRD_C, S_WO, 0x800000)
    g(f"s_lshl_b32 s{T}, s{S_W}, 10")
    g("v_lshlrev_b32 v18, 4, v1")
    g(f"v_add_u32 v18, s{T}, v18")
    g(f"s_lshr_b32 s{T}, s{S_WG}, 5\ns_lshl_b32 s{T}, s{T}, 3\ns_add_u32 s{S_RHO}, s{T}, s{S_PAIR}")
    g(f"s_lshr_b32 s{T}, s{S_RHO}, 3")
    g(f"s_lshl_b32 s{T}, s{T}, 9")
    g(f"s_bfe_u32 s{T+1}, s{S_RHO}, 0x20001\ns_add_u32 s{T}, s{T}, s{T+1}")
    g(f"s_and_b32 s{T+1}, s{S_RHO}, 1\ns_lshl_b32 s{T+1}, s{T+1}, 2\ns_add_u32 s{T}, s{T}, s{T+1}")
    g(f"s_lshr_b32 s{T+1}, s{S_W}, 1\ns_lshl_b32 s{T+1}, s{T+1}, 6\ns_add_u32 s{T}, s{T}, s{T+1}")
    g(f"s_lshl_b32 s{T}, s{T}, 11")
    g(f"s_bfe_u32 s{T+1}, s{S_WG}, 0x20003\ns_lshl_b32 s{T+1}, s{T+1}, 9\ns_add_u32 s{T}, s{T}, s{T+1}")
    g(f"s_and_b32 s{T+1}, s{S_W}, 1\ns_lshl_b32 s{T+1}, s{T+1}, 8\ns_add_u32 s{T}, s{T}, s{T+1}")
    g("v_lshlrev_b32 v19, 18, v17")
    g("v_lshlrev_b32 v20, 4, v16")
    g("v_add_u32 v19, v19, v20")
    g(f"v_add_u32 v19, s{T}, v19")
    g(f"s_lshl_b32 s{T}, s{S_W}, 2\ns_add_u32 s{T}, s{T}, {L_GATE}")
    g(f"v_mov_b32 v20, s{T}")
    if not cfg.get("x_nogate"): lds_spin(g, "v20", 1, "gate")
    stamp(g, 4)
    g.vm_reset()
    TV = cfg["TV"]
    for J in range(32):
        g.throttle(TV)
        off = J*4096
        g(f"s_mov_b32 s{T+3}, {off}")
        g(f"buffer_load_dwordx4 v[{VR+4*J}:{VR+4*J+3}], v18, s[{SRD_A}:{SRD_A+3}], s{T+3} offen nt"); g.vm(f"V{J//8}")
    WO = 32
    g(f"s_lshl_b32 s{T}, s{S_W}, 2\ns_add_u32 s{T}, s{T}, {L_VISS}")
    g(f"v_mov_b32 v20, s{T}\nv_mov_b32 v21, 1")
    g("ds_write_b32 v20, v21")
    stamp(g, 5)
    def issue_wo():
        for m_ in range(8):
            g(f"s_mov_b32 s{T+3}, {m_*16384}")
            g(f"buffer_load_dwordx4 v[{WO+4*m_}:{WO+4*m_+3}], v19, s[{SRD_C}:{SRD_C+3}], s{T+3} offen nt"); g.vm("wo")
    srd(g, SRD_A, S_W1, 1024*3584*2)
    srd(g, SRD_B, S_W2, 1024*3584*2)
    g(f"s_mul_i32 s{T}, s{S_KAP}, {32*7168}")
    g(f"s_lshl_b32 s{T+1}, s{S_CG1}, 10\ns_add_u32 s{T}, s{T}, s{T+1}")
    g(f"s_lshl_b32 s{T+1}, s{S_W}, 8\ns_add_u32 s{T}, s{T}, s{T+1}")
    g(f"s_cmp_ge_u32 s{S_WG}, 224\ns_cselect_b32 s{T+1}, 0x40000000, 0\ns_add_u32 s{T}, s{T}, s{T+1}")
    g(f"s_mov_b32 s{T+1}, {8*7168}")
    g(f"v_mul_lo_u32 v21, v17, s{T+1}")
    g("v_lshlrev_b32 v20, 4, v16")
    g("v_add_u32 v21, v21, v20")
    g(f"v_add_u32 v21, s{T}, v21")
    g(f"s_lshr_b32 s{T}, s{S_WG}, 4\ns_lshl_b32 s{T}, s{T}, 3\ns_add_u32 s{S_PHI}, s{T}, s{S_PAIR}")
    g(f"s_lshl_b32 s{T}, s{S_PHI}, 16")
    g(f"s_bfe_u32 s{T+1}, s{S_WG}, 0x10003\ns_lshl_b32 s{T+1}, s{T+1}, 10\ns_add_u32 s{T}, s{T}, s{T+1}")
    g(f"s_lshl_b32 s{T+1}, s{S_W}, 8\ns_add_u32 s{T}, s{T}, s{T+1}")
    g("v_lshlrev_b32 v23, 14, v17")
    g("v_add_u32 v23, v23, v20")
    g(f"v_add_u32 v23, s{T}, v23")
    g(f"s_lshl_b32 s{T}, s{S_W}, 2\ns_add_u32 s{T}, s{T}, {L_SISS}")
    g(f"v_mov_b32 v20, s{T}")
    if cfg["wo_at"] == "viss":
        lds_spin(g, "v20", 1, "siss")
        issue_wo()
    g(f"s_lshl_b32 s{T}, s{S_W}, 2\ns_add_u32 s{T}, s{T}, {L_PFLAG}")
    g(f"v_mov_b32 v20, s{T}")
    lds_spin(g, "v20", 1, "pflag")
    stamp(g, 6)
    O = 64
    for r in range(32): g(f"v_mov_b32 v{O+r}, 0")
    g(f"s_lshl_b32 s{T}, s{S_W}, 12\ns_add_u32 s{T}, s{T}, {L_P}")
    g("v_lshlrev_b32 v20, 4, v1")
    g(f"v_add_u32 v20, s{T}, v20")
    for blk in range(4):
        g(f"ds_read_b128 v[{112+4*(blk&1)}:{115+4*(blk&1)}], v20 offset:{blk*1024}") if blk < 2 else None
    g(f"s_mov_b32 s{T+4}, 0x05040100\ns_mov_b32 s{T+5}, 0x07060302")
    for blk in range(4):
        P = 112 + 4*(blk & 1)
        g.wait(f"V{blk}")
        if blk == 0: g("s_waitcnt lgkmcnt(1)")
        elif blk == 1: g("s_waitcnt lgkmcnt(1)")
        elif blk == 2: g("s_waitcnt lgkmcnt(1)")
        else: g("s_waitcnt lgkmcnt(0)")
        base = VR + 32*blk
        for w4 in range(4):
            B0 = 96 + 8*(w4 & 1)
            for par in range(2):
                for i4 in range(4):
                    g(f"v_perm_b32 v{B0+4*par+i4}, v{base+4*(2*i4+1)+w4}, v{base+4*(2*i4)+w4}, s{T+4+par}")
            for par in range(2):
                e = 2*w4 + par
                g(f"v_mfma_f32_16x16x32_bf16 v[{O+4*e}:{O+4*e+3}], v[{P}:{P+3}], v[{B0+4*par}:{B0+4*par+3}], v[{O+4*e}:{O+4*e+3}]")
        if blk + 2 < 4:
            g(f"ds_read_b128 v[{P}:{P+3}], v20 offset:{(blk+2)*1024}")
    stamp(g, 7)
    W1R, W2R = 128, 160
    def issue_w1():
        for m_ in range(8):
            g(f"s_mov_b32 s{T+3}, {m_*7168}")
            g(f"buffer_load_dwordx4 v[{W1R+4*m_}:{W1R+4*m_+3}], v21, s[{SRD_A}:{SRD_A+3}], s{T+3} offen nt"); g.vm("w1")
    def issue_w2():
        for m_ in range(8):
            g(f"s_mov_b32 s{T+3}, {m_*2048}")
            g(f"buffer_load_dwordx4 v[{W2R+4*m_}:{W2R+4*m_+3}], v23, s[{SRD_B}:{SRD_B+3}], s{T+3} offen nt"); g.vm("w2")
    def hookpt(name):
        if cfg["wo_at"] == name: issue_wo()
        if cfg["w1_at"] == name: issue_w1()
        if cfg["w2_at"] == name: issue_w2()
    hookpt("pv")
    for e in range(4):
        for r in range(4):
            g(f"v_permlane32_swap_b32 v{O+4*e+r}, v{O+4*(e+4)+r}")
    for e in range(4):
        g(f"ds_write_b128 v20, v[{O+4*e}:{O+4*e+3}] offset:{e*1024}")
    g("s_waitcnt lgkmcnt(0)")
    g("s_barrier")
    stamp(g, 8)
    hookpt("bo0")
    if "bo" in (cfg["wo_at"], cfg["w1_at"], cfg["w2_at"]):
        g("s_barrier")
        hookpt("bo")
    if cfg.get("adapt"):
        g(f"s_lshl_b32 s{T}, s{S_W}, 2\ns_add_u32 s{T}, s{T}, {L_EARLY}\nv_mov_b32 v28, s{T}")
        g("s_barrier")
        g("ds_read_b32 v28, v28")
        g("s_waitcnt lgkmcnt(0)")
        g(f"v_readfirstlane_b32 s{S_EARLY}, v28")
        Lne = g.nl("L_notearly")
        g(f"s_cmp_eq_u32 s{S_EARLY}, 0")
        g(f"s_cbranch_scc1 {Lne}")
        sv = list(g.out)
        issue_w1()
        if cfg["adapt"] >= 2: issue_w2()
        g.out = sv
        g.label(Lne)
    MB = f"s[{S_MASKB}:{S_MASKB+1}]"
    g(f"s_lshl_b32 s{T}, s{S_RHO}, 2\ns_bfe_u32 s{T+1}, s{S_WG}, 0x20003\ns_add_u32 s{T}, s{T}, s{T+1}\ns_mul_i32 s{T}, s{T}, {PS3}")
    g(f"s_and_b32 s{T+1}, s{S_W}, 1\ns_lshl_b32 s{T+1}, s{T+1}, 10\ns_add_u32 s{T}, s{T}, s{T+1}\ns_add_u32 s{T}, s{T}, {hex(WS_H3)}")
    g("v_lshrrev_b32 v24, 2, v16\nv_lshlrev_b32 v24, 8, v24")
    g("v_lshrrev_b32 v25, 1, v17\nv_lshlrev_b32 v25, 7, v25\nv_add_u32 v24, v24, v25")
    g("v_and_b32 v25, 3, v16\nv_lshlrev_b32 v25, 5, v25\nv_add_u32 v24, v24, v25")
    g("v_and_b32 v25, 1, v17\nv_lshlrev_b32 v25, 4, v25\nv_add_u32 v24, v24, v25")
    g(f"v_add_u32 v24, s{T}, v24")
    g("v_lshrrev_b32 v25, 3, v16\nv_lshlrev_b32 v25, 8, v25\nv_lshlrev_b32 v26, 6, v17\nv_add_u32 v25, v25, v26")
    g(f"s_lshr_b32 s{T}, s{S_W}, 1\ns_lshl_b32 s{T}, s{T}, 5\nv_add_u32 v25, s{T}, v25")
    g("v_lshrrev_b32 v125, 3, v16\nv_lshlrev_b32 v125, 7, v125\nv_lshlrev_b32 v124, 5, v17\nv_add_u32 v125, v125, v124")
    g(f"s_and_b32 s{T}, s{S_W}, 1\ns_lshl_b32 s{T}, s{T}, 10\ns_add_u32 s{T}, s{T}, {L_RED}")
    g(f"v_lshlrev_b32 v26, 4, v1\nv_add_u32 v26, s{T}, v26")
    D, D2, DUP = 64, 68, 96
    def fetch_act(addr, base, hook):
        g(f"ds_read_b128 v[{DUP}:{DUP+3}], {addr} offset:{base}")
        g(f"ds_read_b128 v[{DUP+4}:{DUP+7}], {addr} offset:{base+16}")
        hookpt(hook)
        g("s_waitcnt lgkmcnt(0)")
    if cfg.get("adapt"):
        Lw = g.nl("L_wow"); Lw2 = g.nl("L_wow2")
        g(f"s_cmp_eq_u32 s{S_EARLY}, 0\ns_cbranch_scc1 {Lw}")
        g(f"s_waitcnt vmcnt({16 if cfg['adapt'] >= 2 else 8})\ns_branch {Lw2}")
        g.label(Lw); g("s_waitcnt vmcnt(0)"); g.label(Lw2)
        g.vm_reset()
    else:
        g.wait("wo")
    g("s_barrier")
    stamp(g, 9)
    fetch_act("v25", L_ACT2, "b2")
    diag_mfma(g, DUP, MSK, WO, D, D2, 112)
    for r in range(4): g(f"v_add_f32 v{D+r}, v{D+r}, v{D2+r}")
    Lrh0 = g.nl("L_rh0"); Lrhd = g.nl("L_rhd")
    g(f"s_cmp_lt_u32 s{S_W}, 2")
    g(f"s_cbranch_scc1 {Lrh0}")
    g(f"ds_write_b128 v26, v[{D}:{D+3}]")
    g("s_waitcnt lgkmcnt(0)")
    g("s_barrier")
    g(f"s_branch {Lrhd}")
    g.label(Lrh0)
    g("s_barrier")
    g("ds_read_b128 v[96:99], v26")
    g("s_waitcnt lgkmcnt(0)")
    for r in range(4): g(f"v_add_f32 v{D+r}, v{D+r}, v{96+r}")
    tags_apply(g, D)
    g(f"buffer_store_dwordx4 v[{D}:{D+3}], v24, s[{SRD_WS}:{SRD_WS+3}], 0 offen sc1")
    g.label(Lrhd)
    stamp(g, 10)
    if cfg.get("adapt"):
        Ls = g.nl("L_s3late"); Ls2 = g.nl("L_s3done")
        g(f"s_cmp_eq_u32 s{S_EARLY}, 0\ns_cbranch_scc1 {Ls}")
        g(f"s_waitcnt vmcnt(0)\ns_branch {Ls2}")
        g.label(Ls)
        issue_w1()
        g("s_waitcnt vmcnt(8)")
        g.label(Ls2)
        g.vm_reset(); g.vm("w1")
    elif cfg["w1_at"] == "s3" or cfg["w2_at"] == "s3":
        n_after = (8 if cfg["w1_at"] == "s3" else 0) + (8 if cfg["w2_at"] == "s3" else 0)
        if cfg["xbar"]: g("s_barrier")
        hookpt("s3")
        g(f"s_waitcnt vmcnt({n_after})")
    elif "b2" in (cfg["w1_at"], cfg["w2_at"]):
        pass
    else:
        g("s_waitcnt vmcnt(0)")
        g.vm_reset()
    stamp(g, 20)
    g("s_barrier")
    if "p3" in (cfg["w1_at"], cfg["w2_at"]):
        g("s_barrier")
        hookpt("p3")
    ZA, ZB, CA = 192, 196, 200
    g("v_mov_b32 v104, 0x3f803f80")
    for w4 in range(4): g(f"v_and_b32 v{112+w4}, v104, v{MSK+w4}")
    g(f"s_mul_i32 s{T}, s{S_KAP}, 7\ns_add_u32 s{T}, s{T}, s{S_CG1}\ns_mul_i32 s{T}, s{T}, {PS4}")
    g(f"s_mul_i32 s{T+1}, s{S_W}, {4*384}\ns_add_u32 s{T}, s{T}, s{T+1}\ns_add_u32 s{T}, s{T}, {hex(WS_H4)}")
    g("v_lshrrev_b32 v26, 2, v16\nv_mul_u32_u24 v26, 384, v26")
    g("v_and_b32 v27, 3, v16\nv_lshlrev_b32 v27, 5, v27\nv_add_u32 v26, v26, v27")
    g("v_and_b32 v27, 1, v17\nv_lshlrev_b32 v27, 4, v27\nv_add_u32 v26, v26, v27")
    g(f"v_add_u32 v26, s{T}, v26")
    g("v_lshrrev_b32 v27, 1, v17\nv_lshlrev_b32 v27, 7, v27")
    g("v_add_u32 v28, v26, v27")
    g("v_add_u32 v29, 256, v26")
    g.wait("w1")
    for m_ in range(8):
        c = "0" if m_ == 0 else f"v[{CA}:{CA+3}]"
        g(f"v_mfma_f32_16x16x32_bf16 v[{CA}:{CA+3}], v[112:115], v[{W1R+4*m_}:{W1R+4*m_+3}], {c}")
    g("s_barrier")
    stamp(g, 11)
    g(f"s_cmp_ge_u32 s{S_WG}, 224")
    g("s_cbranch_scc1 L_fin")
    fetch_act("v125", L_ACT3, "b3")
    diag_mfma(g, DUP, MSK, W1R, ZA, ZB, 112)
    for r in range(4): g(f"v_add_f32 v{ZA+r}, v{ZA+r}, v{ZB+r}")
    tags_apply(g, CA)
    tags_apply(g, ZA)
    g(f"buffer_store_dwordx4 v[{ZA}:{ZA+3}], v28, s[{SRD_WS}:{SRD_WS+3}], 0 offen sc1")
    g("s_mov_b32 exec_hi, 0")
    g(f"buffer_store_dwordx4 v[{CA}:{CA+3}], v29, s[{SRD_WS}:{SRD_WS+3}], 0 offen sc1")
    g("s_mov_b64 exec, -1")
    stamp(g, 12)
    if cfg.get("adapt", 0) >= 2:
        Ls = g.nl("L_s4late"); Ls2 = g.nl("L_s4done")
        g(f"s_cmp_eq_u32 s{S_EARLY}, 0\ns_cbranch_scc1 {Ls}")
        g(f"s_waitcnt vmcnt(0)\ns_branch {Ls2}")
        g.label(Ls)
        issue_w2()
        g("s_waitcnt vmcnt(8)")
        g.label(Ls2)
    elif cfg["w2_at"] == "s4":
        if cfg["xbar"]: g("s_barrier")
        issue_w2()
        g("s_waitcnt vmcnt(8)")
    elif cfg["w2_at"] == "b3":
        pass
    else:
        g("s_waitcnt vmcnt(0)")
    stamp(g, 21)
    g("s_barrier")
    g(f"s_lshl_b32 s{T}, s{S_PHI}, 1\ns_bfe_u32 s{T+1}, s{S_WG}, 0x10003\ns_add_u32 s{T}, s{T}, s{T+1}\ns_mul_i32 s{T}, s{T}, {PS5}")
    g(f"s_lshl_b32 s{T+1}, s{S_W}, 10\ns_add_u32 s{T}, s{T}, s{T+1}\ns_add_u32 s{T}, s{T}, {hex(WS_H5)}")
    g("v_lshrrev_b32 v24, 1, v16\nv_lshlrev_b32 v24, 7, v24")
    g("v_lshrrev_b32 v25, 1, v17\nv_lshlrev_b32 v25, 6, v25\nv_add_u32 v24, v24, v25")
    g("v_and_b32 v25, 1, v16\nv_lshlrev_b32 v25, 5, v25\nv_add_u32 v24, v24, v25")
    g("v_and_b32 v25, 1, v17\nv_lshlrev_b32 v25, 4, v25\nv_add_u32 v24, v24, v25")
    g(f"v_add_u32 v24, s{T}, v24")
    FA, FB = 192, 196
    g("s_waitcnt vmcnt(0)")
    g("s_barrier")
    stamp(g, 13)
    fetch_act("v125", L_ACT4, "b4")
    diag_mfma(g, DUP, MSK, W2R, FA, FB, 112)
    for r in range(4): g(f"v_add_f32 v{FA+r}, v{FA+r}, v{FB+r}")
    tags_apply(g, FA)
    g(f"buffer_store_dwordx4 v[{FA}:{FA+3}], v24, s[{SRD_WS}:{SRD_WS+3}], 0 offen sc1")
    stamp(g, 14)
    g("s_waitcnt vmcnt(0)")
    stamp(g, 22)
    g("s_barrier")
    g("s_branch L_final")

def sqrt_exact(g, dst, src, t0, t1):
    g(f"v_sqrt_f32 v{dst}, v{src}")
    g(f"v_rcp_f32 v{t0}, v{dst}")
    g(f"v_fma_f32 v{t1}, -v{dst}, v{dst}, v{src}")
    g(f"v_mul_f32 v{t0}, 0.5, v{t0}")
    g(f"v_fma_f32 v{dst}, v{t1}, v{t0}, v{dst}")

def make_tags_from(g, vreg):
    make_tags(g)

def kw_path(g):
    cfg = g.cfg
    T = S_T0
    g.label("L_kw")
    g.out = ["pf", "E"] if cfg.get("prefetch", 1) else ["E"]
    KW = 99
    g(f"s_sub_u32 s{KW}, s{S_W}, 4")
    g(f"s_lshl_b32 s{T}, s{S_PAIR}, 22")
    g(f"s_lshl_b32 s{T+1}, s{S_S}, 17")
    g(f"s_add_u32 s{T}, s{T}, s{T+1}")
    srd(g, SRD_A, S_K, 0x20000, add=T)
    g("v_and_b32 v16, 15, v1")
    g("v_lshrrev_b32 v17, 4, v1")
    g("v_and_b32 v18, 3, v16\nv_lshlrev_b32 v18, 4, v18")
    g("v_bfe_u32 v19, v16, 2, 1\nv_add_u32 v18, v18, v19")
    g(f"s_lshl_b32 s{T}, s{KW}, 2\nv_add_u32 v18, s{T}, v18\nv_lshlrev_b32 v18, 8, v18")
    g("v_lshrrev_b32 v19, 3, v16\nv_lshlrev_b32 v19, 6, v19\nv_add_u32 v18, v18, v19")
    g("v_lshlrev_b32 v19, 4, v17\nv_add_u32 v18, v18, v19")
    KR = 128
    TK = cfg["TK"]
    if cfg.get("tlb"):
        ch = cfg["tlb"]
        g(f"v_mul_u32_u24 v19, {ch}, v1\nv_add_u32 v19, {ch-128}, v19")
        n_i = -(-WS_END // (64*ch))
        for i in range(n_i):
            g(f"s_mov_b32 s{T+3}, {i*64*ch}")
            g(f"buffer_load_dword v{250+i}, v19, s[{SRD_WS}:{SRD_WS+3}], s{T+3} offen"); g.vm("tlb")
    if cfg["b0_first"]:
        g("s_barrier")
    n = 0
    for blk in range(4):
        for t in range(4):
            for st in range(2):
                g.throttle(TK)
                so = blk*32768 + (t & 1)*16384
                imm = (t >> 1)*512 + st*128
                reg = KR + 32*blk + 8*t + 4*st
                g(f"s_mov_b32 s{T+3}, {so}")
                g(f"buffer_load_dwordx4 v[{reg}:{reg+3}], v18, s[{SRD_A}:{SRD_A+3}], s{T+3} offen offset:{imm} nt"); g.vm("K")
                n += 1
                if n == min(TK, 4) and not cfg["b0_first"]:
                    g("s_barrier")
                if n == 24:
                    make_tags(g)
                    g(f"s_lshl_b32 s{T}, s{S_PAIR}, 15\ns_lshl_b32 s{T+1}, s{KW}, 11\ns_add_u32 s{T}, s{T}, s{T+1}\ns_add_u32 s{T}, s{T}, {hex(WS_QBOX)}")
                    g("v_lshlrev_b32 v19, 4, v1")
                    g(f"v_add_u32 v19, s{T}, v19")
                    g(f"s_lshl_b32 s{T}, s{KW}, 2\ns_add_u32 s{T}, s{T}, {L_GATE}")
                    g(f"v_mov_b32 v21, s{T}\nv_mov_b32 v22, 1")
    QG = 64
    def issue_q():
        for ks in range(4):
            g(f"s_mov_b32 s{T+3}, {ks*8192}")
            for hf in range(2):
                g(f"buffer_load_dwordx4 v[{QG+8*ks+4*hf}:{QG+8*ks+4*hf+3}], v19, s[{SRD_WS}:{SRD_WS+3}], s{T+3} offen offset:{1024*hf} sc1")
    def check_q():
        g(f"v_xor_b32 v20, s{S_NONCE}, v{QG+1}")
        g(f"v_mov_b32 v21, s{S_NONCE}")
        for i in range(1, 16):
            g(f"v_bitop3_b32 v20, v20, v{QG+2*i+1}, v21 bitop3:0xf6")
        g("v_cmp_ne_u32 vcc, 0, v20")
    def gate_hook():
        g("ds_write_b32 v21, v22")
        stamp(g, 1)
    if cfg.get("x_noq"):
        gate_hook(); g("s_waitcnt vmcnt(0)"); g.vm_reset()
    else:
        poll_gather(g, "q", issue_q, 0, QG, 20, 0, hook=gate_hook, check=check_q)
    stamp(g, 2)
    for j in range(4):
        g(f"v_add_f32 v{QG+2*j}, v{QG+2*j}, v{QG+8+2*j}")
        g(f"v_add_f32 v{QG+16+2*j}, v{QG+16+2*j}, v{QG+24+2*j}")
        g(f"v_add_f32 v{QG+2*j}, v{QG+2*j}, v{QG+16+2*j}")
    g(f"v_cvt_pk_bf16_f32 v{QG}, v{QG}, v{QG+2}\nv_cvt_pk_bf16_f32 v{QG+1}, v{QG+4}, v{QG+6}")
    g(f"s_lshl_b32 s{T}, s{KW}, 9\ns_add_u32 s{T}, s{T}, {L_Q}")
    g(f"v_lshlrev_b32 v19, 2, v1\nv_add_u32 v19, s{T}, v19")
    g(f"ds_write_b32 v19, v{QG}")
    g(f"ds_write_b32 v19, v{QG+1} offset:256")
    g("s_waitcnt lgkmcnt(0)")
    g("s_mov_b64 exec, 1")
    g(f"v_mov_b32 v21, {L_QRDY}\nv_mov_b32 v22, 1")
    g("ds_add_u32 v21, v22")
    g("s_mov_b64 exec, -1")
    g(f"v_mov_b32 v21, {L_QRDY}")
    lds_spin(g, "v21", 4, "qrdy")
    g("v_and_b32 v19, 7, v16\nv_lshlrev_b32 v19, 8, v19")
    g("v_lshrrev_b32 v20, 3, v16\nv_lshlrev_b32 v20, 6, v20\nv_add_u32 v19, v19, v20")
    g("v_lshlrev_b32 v20, 4, v17\nv_add_u32 v19, v19, v20")
    QB = 8
    g(f"ds_read_b128 v[{QB}:{QB+3}], v19 offset:{L_Q}")
    g(f"ds_read_b128 v[{QB+4}:{QB+7}], v19 offset:{L_Q+128}")
    g("s_waitcnt lgkmcnt(0)")
    stamp(g, 3)
    S = 32
    DT = (64, 96)
    for blk in range(4):
        d = DT[blk & 1]
        for t in range(4):
            for st in range(2):
                reg = KR + 32*blk + 8*t + 4*st
                c = "0" if st == 0 else f"v[{d+4*t}:{d+4*t+3}]"
                g(f"v_mfma_f32_16x16x32_bf16 v[{d+4*t}:{d+4*t+3}], v[{reg}:{reg+3}], v[{QB+4*st}:{QB+4*st+3}], {c}")
        if blk >= 1:
            qk_reduce(g, DT[(blk-1) & 1], S + 8*(blk-1))
    qk_reduce(g, DT[1], S + 24)
    stamp(g, 4)
    SC = hex(f2u(128 ** -0.5))
    for i in range(0, 32, 2):
        a, b = S+i, S+i+1
        g(f"v_cvt_pk_bf16_f32 v64, v{a}, v{b}")
        g(f"v_lshlrev_b32 v{a}, 16, v64\nv_and_b32 v{b}, 0xffff0000, v64")
        g(f"v_mul_f32 v{a}, {SC}, v{a}\nv_mul_f32 v{b}, {SC}, v{b}")
        g(f"v_cvt_pk_bf16_f32 v65, v{a}, v{b}")
        g(f"v_lshlrev_b32 v{a}, 16, v65\nv_and_b32 v{b}, 0xffff0000, v65")
    g(f"v_max3_f32 v64, v{S}, v{S+1}, v{S+2}")
    for i in range(3, 31, 2):
        g(f"v_max3_f32 v64, v64, v{S+i}, v{S+i+1}")
    g(f"v_max_f32 v64, v64, v{S+31}")
    allreduce_hi(g, 64, 65, "v_max_f32")
    L2E = hex(f2u(LOG2E))
    g(f"s_mov_b32 s{T+8}, {L2E}")
    g(f"v_mul_f32 v65, s{T+8}, v64")
    for i in range(32):
        g(f"v_fma_f32 v{S+i}, v{S+i}, s{T+8}, -v65")
    for i in range(32):
        g(f"v_exp_f32 v{S+i}, v{S+i}")
    g(f"v_add_f32 v66, v{S}, v{S+1}")
    for i in range(2, 32, 2):
        g(f"v_add_f32 v67, v{S+i}, v{S+i+1}\nv_add_f32 v66, v66, v67")
    allreduce_hi(g, 66, 67, "v_add_f32")
    g(f"s_lshl_b32 s{T}, s{KW}, 12\ns_add_u32 s{T}, s{T}, {L_P}")
    g(f"v_lshlrev_b32 v20, 4, v1\nv_add_u32 v20, s{T}, v20")
    for blk in range(4):
        for i4 in range(4):
            g(f"v_cvt_pk_bf16_f32 v{68+4*blk+i4}, v{S+8*blk+2*i4}, v{S+8*blk+2*i4+1}")
        g(f"ds_write_b128 v20, v[{68+4*blk}:{71+4*blk}] offset:{blk*1024}")
    g(f"s_lshl_b32 s{T}, s{KW}, 6\ns_add_u32 s{T}, s{T}, {L_STAT}")
    g(f"v_lshlrev_b32 v19, 3, v1\nv_add_u32 v19, s{T}, v19")
    g("v_mov_b32 v84, v64\nv_mov_b32 v85, v66")
    g("s_mov_b64 exec, 0xff")
    g("ds_write_b64 v19, v[84:85]")
    g("s_mov_b64 exec, -1")
    g(f"s_lshl_b32 s{T}, s{KW}, 2\ns_add_u32 s{T}, s{T}, {L_PFLAG}")
    g(f"v_mov_b32 v23, s{T}\nv_mov_b32 v22, 1\nv_mov_b32 v21, {L_SCNT}")
    g("s_waitcnt lgkmcnt(0)")
    g("ds_write_b32 v23, v22")
    g("s_mov_b64 exec, 1")
    g("ds_add_u32 v21, v22")
    g("s_mov_b64 exec, -1")
    stamp(g, 4)
    lds_spin(g, "v21", 4, "scnt")
    stamp(g, 5)
    g(f"v_and_b32 v19, 7, v1\nv_lshlrev_b32 v19, 3, v19")
    for k in range(4):
        g(f"ds_read_b64 v[{68+2*k}:{69+2*k}], v19 offset:{L_STAT + 64*k}")
    g("s_waitcnt lgkmcnt(0)")
    for k in range(4): g(f"v_mov_b32 v{32+k}, v{68+2*k}")
    g("v_max3_f32 v76, v68, v70, v72\nv_max_f32 v76, v76, v74")
    for k in range(4):
        g(f"v_sub_f32 v{68+2*k}, v{68+2*k}, v76\nv_mul_f32 v{68+2*k}, s{T+8}, v{68+2*k}")
    for k in range(4): g(f"v_exp_f32 v{68+2*k}, v{68+2*k}")
    g("v_mul_f32 v77, v68, v69\nv_fmac_f32 v77, v70, v71\nv_fmac_f32 v77, v72, v73\nv_fmac_f32 v77, v74, v75")
    Lnp = g.nl("L_nostat")
    g(f"s_cmp_lg_u32 s{KW}, 0")
    g(f"s_cbranch_scc1 {Lnp}")
    g("v_mov_b32 v80, v76\nv_mov_b32 v81, v77")
    g("v_mov_b32_dpp v82, v76 quad_perm:[1,0,3,2] row_mask:0xf bank_mask:0xf")
    g("v_mov_b32_dpp v83, v77 quad_perm:[1,0,3,2] row_mask:0xf bank_mask:0xf")
    tags_apply(g, 80)
    g(f"s_lshl_b32 s{T}, s{S_PAIR}, 5\ns_add_u32 s{T}, s{T}, s{S_S}\ns_lshl_b32 s{T}, s{T}, 7\ns_add_u32 s{T}, s{T}, {hex(WS_STAT)}")
    g("v_lshlrev_b32 v19, 3, v1")
    g("s_mov_b64 exec, 0x5555")
    g(f"buffer_store_dwordx4 v[80:83], v19, s[{SRD_WS}:{SRD_WS+3}], s{T} offen sc1")
    g("s_mov_b64 exec, -1")
    g.label(Lnp)
    g(f"s_lshl_b32 s{T}, s{S_PAIR}, 12\ns_add_u32 s{T}, s{T}, {hex(WS_STAT)}")
    g("v_lshrrev_b32 v19, 3, v1\nv_lshlrev_b32 v19, 7, v19")
    g("v_bfe_u32 v20, v1, 1, 2\nv_lshlrev_b32 v20, 4, v20\nv_add_u32 v19, v19, v20")
    g(f"v_add_u32 v19, s{T}, v19")
    g(f"s_lshl_b32 s{T}, s{KW}, 2\ns_add_u32 s{T}, s{T}, {L_VISS}")
    g(f"v_mov_b32 v21, s{T}")
    lds_spin(g, "v21", 1, "viss")
    def issue_st():
        for n in range(4):
            g(f"buffer_load_dwordx4 v[{80+4*n}:{83+4*n}], v19, s[{SRD_WS}:{SRD_WS+3}], 0 offen offset:{n*1024} sc1")
    def siss_hook():
        g(f"s_lshl_b32 s{T}, s{KW}, 2\ns_add_u32 s{T}, s{T}, {L_SISS}")
        g(f"v_mov_b32 v21, s{T}\nv_mov_b32 v22, 1")
        g("ds_write_b32 v21, v22")
    poll_gather(g, "stat", issue_st, 4, 80, 78, cfg["sleep_stat"], hook=siss_hook)
    stamp(g, 6)
    g("v_and_b32 v20, 1, v1\nv_cmp_eq_u32 vcc, 1, v20")
    g(f"s_not_b32 s{T}, s{S_TAGM}")
    for n in range(4):
        g(f"v_cndmask_b32 v{80+4*n}, v{80+4*n}, v{82+4*n}, vcc")
        g(f"v_cndmask_b32 v{81+4*n}, v{81+4*n}, v{83+4*n}, vcc")
        g(f"v_and_b32 v{80+4*n}, s{T}, v{80+4*n}")
    g("v_max3_f32 v78, v80, v84, v88\nv_max_f32 v78, v78, v92")
    dpp_acc(g, 78, "v_max_f32", "row_ror:8")
    allreduce_hi(g, 78, 79, "v_max_f32")
    for n in range(4):
        g(f"v_sub_f32 v{80+4*n}, v{80+4*n}, v78\nv_mul_f32 v{80+4*n}, s{T+8}, v{80+4*n}")
    for k in range(4):
        g(f"v_sub_f32 v{32+k}, v{32+k}, v78\nv_mul_f32 v{32+k}, s{T+8}, v{32+k}")
    for n in range(4): g(f"v_exp_f32 v{80+4*n}, v{80+4*n}")
    for k in range(4): g(f"v_exp_f32 v{32+k}, v{32+k}")
    g("v_mul_f32 v79, v80, v81\nv_fmac_f32 v79, v84, v85\nv_fmac_f32 v79, v88, v89\nv_fmac_f32 v79, v92, v93")
    dpp_acc(g, 79, "v_add_f32", "row_ror:8")
    allreduce_hi(g, 79, 80, "v_add_f32")
    g("v_rcp_f32 v65, v79")
    g("v_fma_f32 v66, -v79, v65, 1.0\nv_fma_f32 v65, v66, v65, v65")
    for k in range(4): g(f"v_mul_f32 v{32+k}, v{32+k}, v65")
    g(f"s_lshl_b32 s{T}, s{KW}, 7\ns_add_u32 s{T}, s{T}, {L_FAC2}")
    g(f"v_and_b32 v19, 7, v1\nv_lshlrev_b32 v19, 2, v19\nv_add_u32 v19, s{T}, v19")
    for k in range(4): g(f"ds_write_b32 v19, v{32+k} offset:{32*k}")
    g(f"v_and_b32 v19, 1, v17\nv_lshlrev_b32 v19, 4, v19\nv_add_u32 v19, s{T}, v19")
    g("s_waitcnt lgkmcnt(0)")
    for k in range(4): g(f"ds_read_b128 v[{36+4*k}:{39+4*k}], v19 offset:{32*k}")
    stamp(g, 7)
    g(f"s_lshl_b32 s{T}, s{S_PAIR}, 5\ns_add_u32 s{T}, s{T}, s{S_S}\ns_mul_i32 s{T}, s{T}, {PS2}")
    g(f"s_lshl_b32 s{T+1}, s{KW}, 10\ns_add_u32 s{T}, s{T}, s{T+1}\ns_add_u32 s{T}, s{T}, {hex(WS_H2)}")
    g("v_lshlrev_b32 v23, 4, v1")
    g(f"v_add_u32 v21, s{T}, v23")
    g(f"s_lshl_b32 s{T}, s{KW}, 10\ns_add_u32 s{T}, s{T}, {L_P}")
    g(f"v_add_u32 v20, s{T}, v23")
    g(f"s_lshr_b32 s{T}, s{S_WG}, 5\ns_lshl_b32 s{T}, s{T}, 3\ns_add_u32 s{S_RHO}, s{T}, s{S_PAIR}")
    g(f"s_lshr_b32 s{T+2}, s{S_WG}, 3")
    g(f"s_mul_i32 s{T+4}, s{T+2}, 37\ns_lshr_b32 s{T+4}, s{T+4}, 8")
    g(f"s_lshl_b32 s{T+4}, s{T+4}, 3\ns_add_u32 s{S_KAP}, s{T+4}, s{S_PAIR}")
    g(f"s_lshr_b32 s{T}, s{S_WG}, 4\ns_lshl_b32 s{T}, s{T}, 3\ns_add_u32 s{S_PHI}, s{T}, s{S_PAIR}")
    g(f"s_lshr_b32 s{S_KB}, s{KW}, 1\ns_and_b32 s{S_KH}, s{KW}, 1")
    g(f"s_lshr_b32 s{T}, s{S_RHO}, 4\ns_lshl_b32 s{T+1}, s{S_KB}, 2\ns_add_u32 s{T}, s{T}, s{T+1}\ns_mul_i32 s{T}, s{T}, {32*PS2}")
    g(f"s_bfe_u32 s{T+1}, s{S_RHO}, 0x20001\ns_lshl_b32 s{T+1}, s{T+1}, 10\ns_add_u32 s{T}, s{T}, s{T+1}")
    g(f"s_bfe_u32 s{T+1}, s{S_RHO}, 0x10003\ns_lshl_b32 s{T+1}, s{T+1}, 8\ns_add_u32 s{T}, s{T}, s{T+1}")
    g(f"s_and_b32 s{T+1}, s{S_RHO}, 1\ns_lshl_b32 s{T+1}, s{T+1}, 9\ns_add_u32 s{T}, s{T}, s{T+1}")
    g(f"s_lshl_b32 s{T+1}, s{S_KH}, 7\ns_add_u32 s{T}, s{T}, s{T+1}\ns_add_u32 s{T}, s{T}, {hex(WS_H2)}")
    g(f"v_lshrrev_b32 v24, 3, v1\nv_mul_u32_u24 v24, {PS2}, v24\nv_and_b32 v22, 7, v1\nv_lshlrev_b32 v22, 4, v22")
    g(f"v_add_u32 v24, v24, v22\nv_add_u32 v24, s{T}, v24")
    g("v_and_b32 v25, 1, v17\nv_lshlrev_b32 v25, 1, v25\nv_lshrrev_b32 v26, 1, v17\nv_or_b32 v25, v25, v26")
    g("v_lshlrev_b32 v26, 6, v25\nv_lshrrev_b32 v27, 2, v22\nv_add_u32 v26, v26, v27")
    g(f"s_lshl_b32 s{T}, s{S_KB}, 8\ns_lshl_b32 s{T+1}, s{S_KH}, 5\ns_add_u32 s{T}, s{T}, s{T+1}\nv_add_u32 v26, s{T}, v26")
    g(f"v_and_b32 v52, 3, v1\nv_lshlrev_b32 v52, 2, v52\nv_add_u32 v52, v52, v25\ns_lshl_b32 s{T}, s{S_KH}, 4\nv_add_u32 v52, s{T}, v52")
    srd(g, SRD_B, S_X, 4096)
    g(f"s_lshl_b32 s{T}, s{S_KB}, 11\ns_lshl_b32 s{T+1}, s{S_KAP}, 6\ns_add_u32 s{T}, s{T}, s{T+1}")
    g(f"v_lshlrev_b32 v53, 1, v52\nv_add_u32 v53, s{T}, v53")
    g(f"buffer_load_ushort v54, v53, s[{SRD_B}:{SRD_B+3}], 0 offen")
    g(f"s_lshl_b32 s{T}, s{S_KB}, 2\nv_mov_b32 v55, s{T}")
    g(f"ds_read_b32 v55, v55 offset:{L_PIV}")
    g(f"v_lshlrev_b32 v56, 2, v52\ns_lshl_b32 s{T}, s{S_KB}, 7\nv_add_u32 v56, s{T}, v56")
    g("s_barrier")
    stamp(g, 8)
    for k in range(4):
        g(f"ds_read_b128 v[{64+4*k}:{67+4*k}], v20 offset:{k*4096}")
    g("s_waitcnt lgkmcnt(0)")
    for r in range(4): g(f"v_mul_f32 v{64+r}, v{64+r}, v{36+r}")
    for k in range(1, 4):
        for r in range(4): g(f"v_fmac_f32 v{64+r}, v{64+4*k+r}, v{36+4*k+r}")
    tags_apply(g, 64)
    g(f"buffer_store_dwordx4 v[64:67], v21, s[{SRD_WS}:{SRD_WS+3}], 0 offen sc1")
    stamp(g, 9)
    if cfg["ack2"]: g("s_waitcnt vmcnt(0)")
    stamp(g, 24)
    def issue_n(nld, step):
        def f():
            for n in range(nld):
                if n*step < 4096:
                    g(f"buffer_load_dwordx4 v[{80+4*n}:{83+4*n}], v24, s[{SRD_WS}:{SRD_WS+3}], 0 offen offset:{n*step} sc1")
                else:
                    g(f"s_mov_b32 s{T+3}, {n*step}")
                    g(f"buffer_load_dwordx4 v[{80+4*n}:{83+4*n}], v24, s[{SRD_WS}:{SRD_WS+3}], s{T+3} offen sc1")
        return f
    hk2 = (lambda: g("s_barrier")) if "bo" in (cfg["wo_at"], cfg["w1_at"], cfg["w2_at"]) else None
    poll_gather(g, "h2", issue_n(4, 8*PS2), 4, 80, 78, cfg["sleep_h2"], hook=hk2)
    stamp(g, 10)
    def sum4():
        for r in range(4):
            g(f"v_add_f32 v{80+r}, v{80+r}, v{84+r}\nv_add_f32 v{88+r}, v{88+r}, v{92+r}")
        for r in range(4): g(f"v_add_f32 v{80+r}, v{80+r}, v{88+r}")
    sum4()
    halve4(g, 80)
    dpp_acc(g, 80, "v_add_f32", "row_ror:8")
    g("v_cvt_pk_bf16_f32 v80, v80, v80")
    g(f"s_mov_b32 s{T}, 0x00ff00ff\ns_mov_b32 s{T+1}, 0x00ff00ff\ns_mov_b64 exec, s[{T}:{T+1}]")
    g(f"ds_write_b32 v26, v80 offset:{L_ACT2}")
    g("s_mov_b64 exec, -1")
    g(f"s_lshr_b32 s{T}, s{S_KAP}, 3\ns_mul_i32 s{T}, s{T}, {PS3}")
    g(f"s_and_b32 s{T+1}, s{S_KAP}, 7\ns_lshl_b32 s{T+1}, s{T+1}, 8\ns_add_u32 s{T}, s{T}, s{T+1}")
    g(f"s_lshl_b32 s{T+1}, s{KW}, 6\ns_add_u32 s{T}, s{T}, s{T+1}\ns_add_u32 s{T}, s{T}, {hex(WS_H3)}")
    g(f"v_lshrrev_b32 v27, 2, v1\nv_and_b32 v22, 3, v1\nv_lshlrev_b32 v22, 4, v22")
    g(f"v_mul_u32_u24 v24, {4*PS3}, v27\nv_add_u32 v24, v24, v22\nv_add_u32 v24, s{T}, v24")
    g("v_lshlrev_b32 v54, 16, v54")
    g("s_waitcnt lgkmcnt(0)")
    g("s_barrier")
    stamp(g, 11)
    g("s_barrier")
    if cfg["xbar"] and "s3" in (cfg["w1_at"], cfg["w2_at"]): g("s_barrier")
    g("s_barrier")
    stamp(g, 25)
    Lsk3 = g.nl("L_skip3")
    hk3 = (lambda: g("s_barrier")) if "p3" in (cfg["w1_at"], cfg["w2_at"]) else None
    QM = f"s[{S_BX}:{S_BX+1}]"
    g(f"s_mov_b32 s{S_BX}, 0x000f000f\ns_mov_b32 s{S_BX+1}, 0x000f000f")
    if hk3 is None:
        g(f"s_cmp_ge_u32 s{S_WG}, 224")
        g(f"s_cbranch_scc1 {Lsk3}")
        poll_gather(g, "h3", issue_n(4, 64*PS3), 4, 80, 78, cfg["sleep_h3"])
    else:
        Lno = g.nl("L_no3")
        g(f"s_cmp_lt_u32 s{S_WG}, 224")
        g(f"s_cbranch_scc1 {Lno}")
        g("s_barrier")
        g(f"s_branch {Lsk3}")
        g.label(Lno)
        poll_gather(g, "h3", issue_n(4, 64*PS3), 4, 80, 78, cfg["sleep_h3"], hook=hk3)
    stamp(g, 12)
    sum4()
    halve4(g, 80)
    dpp_acc(g, 80, "v_add_f32", "row_ror:8")
    dpp_acc(g, 80, "v_add_f32", "row_ror:4")
    bf16r(g, 80, 80)
    g("v_add_f32 v80, v80, v54")
    g("v_cvt_pk_bf16_f32 v80, v80, v80")
    g(f"s_mov_b64 exec, {QM}")
    g(f"ds_write_b32 v56, v80 offset:{L_ACT3}")
    g("s_mov_b64 exec, -1")
    g.label(Lsk3)
    g(f"s_lshr_b32 s{T}, s{S_PHI}, 4\ns_mul_i32 s{T}, s{T}, {PS4}\ns_add_u32 s{T}, s{T}, {hex(WS_H4)}")
    g(f"v_mul_u32_u24 v27, {7*PS4}, v27\nv_add_u32 v27, s{T}, v27")
    g(f"s_and_b32 s{T+1}, s{S_PHI}, 15\ns_mul_i32 s{T+1}, s{T+1}, 384")
    g(f"v_add_u32 v29, s{T+1}, v27\nv_add_u32 v29, v29, v22")
    g(f"s_lshl_b32 s{T}, s{KW}, 6\nv_add_u32 v24, s{T}, v29")
    g(f"s_lshl_b32 s{T}, s{S_KH}, 6\ns_add_u32 s{T}, s{T}, 256\nv_add_u32 v29, s{T}, v29")
    g("v_add_u32 v27, 6144, v27")
    g("s_waitcnt lgkmcnt(0)")
    g("s_barrier")
    stamp(g, 13)
    g(f"s_cmp_ge_u32 s{S_WG}, 224")
    g("s_cbranch_scc1 L_fin")
    Lns = g.nl("L_nostat2")
    g(f"s_cmp_lg_u32 s{KW}, 0")
    g(f"s_cbranch_scc1 {Lns}")
    g("v_lshlrev_b32 v64, 2, v1")
    g(f"ds_read_b32 v65, v64 offset:{L_ACT3}")
    g("v_lshrrev_b32 v66, 5, v1\nv_lshlrev_b32 v66, 2, v66")
    g(f"ds_read_b32 v66, v66 offset:{L_PIV}")
    g(f"s_lshr_b32 s{T+2}, s{S_WG}, 3\ns_mul_i32 s{T+4}, s{T+2}, 37\ns_lshr_b32 s{T+4}, s{T+4}, 8\ns_mul_i32 s{T+5}, s{T+4}, 7\ns_sub_u32 s{T+5}, s{T+2}, s{T+5}")
    g(f"s_mul_i32 s{T}, s{S_KAP}, 7\ns_add_u32 s{T}, s{T}, s{T+5}\ns_mul_i32 s{T}, s{T}, {PS4}\ns_add_u32 s{T}, s{T}, {hex(WS_H4 + 6144)}")
    g("s_waitcnt lgkmcnt(0)")
    g("v_and_b32 v65, 0xffff0000, v65")
    g("v_sub_f32 v68, v65, v66\nv_mul_f32 v69, v68, v68")
    for ctrl in ("quad_perm:[1,0,3,2]", "quad_perm:[2,3,0,1]", "row_half_mirror", "row_ror:8"):
        dpp_acc(g, 68, "v_add_f32", ctrl); dpp_acc(g, 69, "v_add_f32", ctrl)
    for x in (68, 69):
        g(f"v_mov_b32 v70, v{x}\nv_permlane16_swap_b32 v{x}, v70\nv_add_f32 v{x}, v{x}, v70")
    g("v_mov_b32 v74, v68\nv_mov_b32 v75, v69")
    g("v_permlane32_swap_b32 v68, v74\nv_permlane32_swap_b32 v69, v75")
    g("v_mov_b32 v76, v68\nv_mov_b32 v77, v69\nv_mov_b32 v78, v74\nv_mov_b32 v79, v75")
    tags_apply(g, 76)
    g("v_lshlrev_b32 v70, 4, v1")
    g("s_mov_b64 exec, 0xff")
    g(f"buffer_store_dwordx4 v[76:79], v70, s[{SRD_WS}:{SRD_WS+3}], s{T} offen sc1")
    g("s_mov_b64 exec, -1")
    g(f"s_cmp_lg_u32 s{T+5}, 0")
    g(f"s_cbranch_scc1 {Lns}")
    for r in range(4): g(f"v_mov_b32_dpp v{72+r}, v65 quad_perm:[{r},{r},{r},{r}] row_mask:0xf bank_mask:0xf")
    tags_apply(g, 72)
    g("v_lshrrev_b32 v70, 5, v1\nv_lshlrev_b32 v70, 12, v70\nv_and_b32 v71, 31, v1\nv_lshlrev_b32 v71, 2, v71\nv_add_u32 v70, v70, v71")
    g(f"s_lshl_b32 s{T}, s{S_KAP}, 7\ns_add_u32 s{T}, s{T}, {hex(WS_HBOX)}")
    g(f"s_mov_b32 s{T+2}, 0x11111111\ns_mov_b32 s{T+3}, 0x11111111\ns_mov_b64 exec, s[{T+2}:{T+3}]")
    g(f"buffer_store_dwordx4 v[72:75], v70, s[{SRD_WS}:{SRD_WS+3}], s{T} offen sc1")
    g("s_mov_b64 exec, -1")
    g.label(Lns)
    if cfg["xbar"] and cfg["w2_at"] == "s4": g("s_barrier")
    g("s_waitcnt vmcnt(0)")
    g("s_barrier")
    stamp(g, 26)
    def issue_h4():
        g(f"s_mov_b32 s{T+3}, {16*7*PS4}")
        g(f"buffer_load_dwordx4 v[80:83], v24, s[{SRD_WS}:{SRD_WS+3}], 0 offen sc1")
        g(f"buffer_load_dwordx4 v[84:87], v24, s[{SRD_WS}:{SRD_WS+3}], s{T+3} offen sc1")
        g(f"buffer_load_dwordx4 v[88:91], v29, s[{SRD_WS}:{SRD_WS+3}], 0 offen sc1")
        g(f"buffer_load_dwordx4 v[92:95], v29, s[{SRD_WS}:{SRD_WS+3}], s{T+3} offen sc1")
        g(f"buffer_load_dwordx4 v[96:99], v27, s[{SRD_WS}:{SRD_WS+3}], 0 offen sc1")
        g(f"buffer_load_dwordx4 v[100:103], v27, s[{SRD_WS}:{SRD_WS+3}], s{T+3} offen sc1")
    poll_gather(g, "h4", issue_h4, 6, 80, 78, cfg["sleep_h4"])
    stamp(g, 14)
    g(f"s_cmp_eq_u32 s{S_KB}, 1\ns_cselect_b64 s[{T}:{T+1}], -1, 0")
    g(f"v_cndmask_b32 v96, v96, v98, s[{T}:{T+1}]\nv_cndmask_b32 v97, v97, v99, s[{T}:{T+1}]")
    g(f"v_cndmask_b32 v100, v100, v102, s[{T}:{T+1}]\nv_cndmask_b32 v101, v101, v103, s[{T}:{T+1}]")
    g("v_add_f32 v96, v96, v100\nv_add_f32 v97, v97, v101")
    for r in range(4): g(f"v_add_f32 v{80+r}, v{80+r}, v{84+r}\nv_add_f32 v{88+r}, v{88+r}, v{92+r}")
    allreduce_hi(g, 96, 98, "v_add_f32")
    allreduce_hi(g, 97, 99, "v_add_f32")
    halve4(g, 80)
    halve4(g, 88)
    for ctrl in ("row_ror:8", "row_ror:4"):
        for x in (96, 97, 80, 88): dpp_acc(g, x, "v_add_f32", ctrl)
    g("v_mul_f32 v96, 0x3a800000, v96")
    g("v_mul_f32 v97, 0x3a800000, v97")
    g("v_fma_f32 v97, -v96, v96, v97")
    g("v_max_f32 v97, 0, v97")
    g("v_add_f32 v96, v96, v55")
    g("v_cvt_pk_bf16_f32 v96, v96, v97")
    g("v_and_b32 v97, 0xffff0000, v96\nv_lshlrev_b32 v96, 16, v96")
    g(f"v_add_f32 v97, {hex(f2u(1e-5))}, v97")
    bf16r(g, 97, 97)
    g("v_sqrt_f32 v97, v97")
    g("v_fma_f32 v80, -v96, v88, v80")
    bf16r(g, 97, 97)
    g("v_rcp_f32 v97, v97")
    g("v_mul_f32 v80, v80, v97")
    bf16r(g, 80, 80)
    g(f"v_mul_f32 v81, {hex(f2u(-LOG2E))}, v80")
    g("v_exp_f32 v81, v81")
    g("v_add_f32 v81, 1.0, v81")
    g("v_rcp_f32 v81, v81")
    g("v_mul_f32 v80, v80, v81")
    g("v_cvt_pk_bf16_f32 v80, v80, v80")
    g(f"s_mov_b64 exec, {QM}")
    g(f"ds_write_b32 v56, v80 offset:{L_ACT4}")
    g("s_mov_b64 exec, -1")
    g("s_waitcnt lgkmcnt(0)")
    g("s_barrier")
    g("s_barrier")
    g("s_branch L_final")

def qk_reduce(g, d, s):
    for tp in range(2):
        for r in range(4):
            g(f"v_permlane32_swap_b32 v{d+4*tp+r}, v{d+4*(tp+2)+r}")
    for tp in range(2):
        for r in range(4):
            g(f"v_add_f32_dpp v{s+4*tp+r}, v{d+4*(tp+2)+r}, v{d+4*tp+r} row_ror:8 row_mask:0xf bank_mask:0xf")

def final_path(g):
    cfg = g.cfg
    T = S_T0
    g.label("L_final")
    g(f"s_cmp_ge_u32 s{S_WG}, 64")
    g("s_cbranch_scc1 L_fin")
    g("v_and_b32 v16, 15, v1\nv_lshrrev_b32 v17, 4, v1")
    g(f"s_cmp_eq_u32 s{S_W}, 7")
    g("s_cbranch_scc1 L_final_h")
    g(f"s_lshl_b32 s{T}, s{S_W}, 5\ns_lshr_b32 s{T+1}, s{S_WG}, 5\ns_add_u32 s{T}, s{T}, s{T+1}\ns_mul_i32 s{T}, s{T}, {PS5}")
    g(f"s_and_b32 s{T+1}, s{S_WG}, 31\ns_lshl_b32 s{T+1}, s{T+1}, 7\ns_add_u32 s{T}, s{T}, s{T+1}\ns_add_u32 s{T}, s{T}, {hex(WS_H5)}")
    g(f"v_lshrrev_b32 v24, 3, v1\nv_mul_u32_u24 v24, {2*PS5}, v24\nv_and_b32 v27, 7, v1\nv_lshlrev_b32 v27, 4, v27")
    g(f"v_add_u32 v24, v24, v27\nv_add_u32 v24, s{T}, v24")
    g("v_and_b32 v25, 1, v17\nv_lshlrev_b32 v25, 1, v25\nv_lshrrev_b32 v26, 1, v17\nv_or_b32 v25, v25, v26")
    g(f"v_lshlrev_b32 v26, 5, v25\nv_lshlrev_b32 v27, 3, v27\nv_add_u32 v26, v26, v27\ns_lshl_b32 s{T}, s{S_W}, 2\nv_add_u32 v26, s{T}, v26")
    def issue2():
        g(f"buffer_load_dwordx4 v[80:83], v24, s[{SRD_WS}:{SRD_WS+3}], 0 offen sc1")
        g(f"s_mov_b32 s{T+3}, {16*PS5}")
        g(f"buffer_load_dwordx4 v[84:87], v24, s[{SRD_WS}:{SRD_WS+3}], s{T+3} offen sc1")
    poll_gather(g, "h5", issue2, 2, 80, 78, cfg["sleep_h5"])
    stamp(g, 15)
    for r in range(4): g(f"v_add_f32 v{80+r}, v{80+r}, v{84+r}")
    halve4(g, 80)
    dpp_acc(g, 80, "v_add_f32", "row_ror:8")
    g(f"s_mov_b32 s{T}, 0x00ff00ff\ns_mov_b32 s{T+1}, 0x00ff00ff\ns_mov_b64 exec, s[{T}:{T+1}]")
    g(f"ds_write_b32 v26, v80 offset:{L_PART5}")
    g("s_mov_b64 exec, -1")
    g("s_waitcnt lgkmcnt(0)")
    g("s_barrier")
    g("s_branch L_fin")
    g.label("L_final_h")
    g("v_lshrrev_b32 v24, 2, v1\nv_lshlrev_b32 v24, 12, v24\nv_and_b32 v25, 3, v1\nv_lshlrev_b32 v25, 4, v25\nv_add_u32 v24, v24, v25")
    g(f"s_lshl_b32 s{T}, s{S_WG}, 6\ns_add_u32 s{T}, s{T}, {hex(WS_HBOX)}\nv_add_u32 v24, s{T}, v24")
    def issueh():
        g(f"buffer_load_dwordx4 v[80:83], v24, s[{SRD_WS}:{SRD_WS+3}], 0 offen sc1")
    poll_gather(g, "hb", issueh, 1, 80, 78, 0, exec_mask="0xff")
    srd(g, SRD_A, S_OUT, 4096)
    g(f"s_not_b32 s{T}, s{S_TAGM}")
    for r in range(4): g(f"v_and_b32 v{80+r}, s{T}, v{80+r}")
    g("v_lshlrev_b32 v25, 4, v1")
    g("s_mov_b64 exec, 0xff")
    g(f"ds_write_b128 v25, v[80:83] offset:{L_HQ}")
    g("s_mov_b64 exec, -1")
    g("v_lshlrev_b32 v25, 2, v1")
    g(f"ds_read_b32 v84, v25 offset:{L_HQ}")
    g("v_lshlrev_b32 v25, 5, v1")
    g("v_lshrrev_b32 v26, 4, v1\nv_lshlrev_b32 v26, 11, v26\nv_and_b32 v27, 15, v1\nv_lshlrev_b32 v27, 1, v27\nv_add_u32 v26, v26, v27")
    g(f"s_lshl_b32 s{T}, s{S_WG}, 5\nv_add_u32 v26, s{T}, v26")
    g("s_waitcnt lgkmcnt(0)")
    g("s_barrier")
    g("s_mov_b32 exec_hi, 0")
    g(f"ds_read_b128 v[88:91], v25 offset:{L_PART5}")
    g(f"ds_read_b128 v[92:95], v25 offset:{L_PART5+16}")
    g("s_waitcnt lgkmcnt(0)")
    g("v_add_f32 v88, v88, v89\nv_add_f32 v90, v90, v91\nv_add_f32 v92, v92, v93\nv_add_f32 v94, v94, v95")
    g("v_add_f32 v88, v88, v90\nv_add_f32 v92, v92, v94\nv_add_f32 v88, v88, v92")
    bf16r(g, 88, 88)
    g("v_add_f32 v88, v88, v84")
    g("v_cvt_pk_bf16_f32 v88, v88, v88")
    g("v_mov_b32_dpp v89, v88 quad_perm:[1,0,3,2] row_mask:0xf bank_mask:0xf")
    g("v_and_b32 v88, 0xffff, v88\nv_and_b32 v89, 0xffff0000, v89\nv_or_b32 v88, v88, v89")
    g(f"s_mov_b32 s{T}, 0x55555555\ns_mov_b32 exec_lo, s{T}")
    g(f"buffer_store_dword v88, v26, s[{SRD_A}:{SRD_A+3}], 0 offen")
    g(f"s_cmp_lg_u32 s{S_WG}, 0")
    g("s_cbranch_scc1 L_final_noe")
    g("s_mov_b64 exec, 1")
    g(f"v_mov_b32 v24, s{S_NONCE}\nv_mov_b32 v25, 0")
    g(f"buffer_store_dword v24, v25, s[{SRD_WS}:{SRD_WS+3}], 0 offen sc1")
    g.label("L_final_noe")
    g("s_mov_b64 exec, -1")
    stamp(g, 15)
    g.label("L_fin")
    dump_stamps(g)
    g.label("L_end")
    g("s_endpgm")
    g.label("L_code_end")

HEADER = """; Fused preLN GQA decode attention + SiLU FFN layer for MI355X (gfx950).
"""

def build(cfg):
    g = G(cfg)
    a = g.a
    for l in HEADER.strip().split("\n"): a(l)
    a(f"; @launch grid=(256,1,1) block=(512,1,1) lds={LDS_SIZE}")
    a('.amdgcn_target "amdgcn-amd-amdhsa--gfx950"')
    a(".text")
    a(f".globl {NAME}")
    a(".p2align 8")
    a(f".type {NAME},@function")
    a(f"{NAME}:")
    prologue(g)
    saved = list(g.out)
    g.role = 'v'
    vw_path(g)
    g.role = 'k'
    kw_path(g)
    g.role = 'c'
    final_path(g)
    a(f""".section .rodata,"a"
.p2align 6
.amdhsa_kernel {NAME}
  .amdhsa_next_free_vgpr 256
  .amdhsa_next_free_sgpr 102
  .amdhsa_accum_offset 256
  .amdhsa_group_segment_fixed_size 0
  .amdhsa_kernarg_size 88
  .amdhsa_user_sgpr_count 2
  .amdhsa_user_sgpr_kernarg_segment_ptr 1
  .amdhsa_system_sgpr_workgroup_id_x 1
  .amdhsa_float_denorm_mode_32 3
.end_amdhsa_kernel""")
    return hazard.fix(a.text(), verbose=True)

DEFAULT = dict(TK=8, TV=6, b0_first=1, wo_at="pv", w1_at="s3", w2_at="s4", spin_lds=200000, spin_glb=100000, poll_sleep=0,
               sleep_stat=0, sleep_h2=0, sleep_h3=0, sleep_h4=0, sleep_h5=0, prefetch=1, ack2=1, xbar=1)

if __name__ == "__main__":
    cfg = dict(DEFAULT)
    out = sys.argv[1]
    for kv in sys.argv[2:]:
        k, v = kv.split("=")
        cfg[k] = int(v) if v.lstrip("-").isdigit() else v
    open(out, "w").write(build(cfg))
```
